```python
import torch

def _softmax(x, axis=-1):
    return torch.softmax(x, dim=axis)
def _gelu(x):
    return torch.nn.functional.gelu(x, approximate="tanh")
def _silu(x):
    return torch.nn.functional.silu(x)
def _sigmoid(x):
    return torch.sigmoid(x)
def _layernorm(x, axis=-1, eps=1e-5):
    m = x.mean(dim=axis, keepdim=True)
    v = x.var(dim=axis, keepdim=True, unbiased=False)
    return (x - m) / torch.sqrt(v + eps)
def _scatter_add(tgt, idx, src, axis=0):
    return tgt.clone().index_add_(axis, idx, src)
def _segment_sum(src, seg, n):
    out = torch.zeros((n,) + src.shape[1:], dtype=src.dtype)
    return out.index_add_(0, seg, src)
def _pad(x, pw):
    flat = tuple(v for pair in reversed(pw) for v in pair)
    return torch.nn.functional.pad(x, flat)

kernel_name = 'concat_heads__gqa_block_cached__sliding_block_cached__decode'

def setup_inputs():

    _w = (lambda a: (lambda t: t.to(torch.bfloat16) if t.is_floating_point() else t)(torch.as_tensor(a)))
    def _A_setup():
        B, Sq, D = 1, 1, 448
        Hq, Hkv, Sk, Dh = 16, 8, 8192, 256
        assert Hq % Hkv == 0, (Hq, Hkv)
        return {
            "x": _w((lambda *s: torch.randn(*s, dtype=torch.bfloat16) * 0.8)(B, Sq, D)),
            "k_cache": _w((lambda *s: torch.randn(*s, dtype=torch.bfloat16) * 1.6)(B, Hkv, Sk, Dh)),
            "v_cache": _w((lambda *s: torch.randn(*s, dtype=torch.bfloat16) * 0.2)(B, Hkv, Sk, Dh)),
            "wq": _w((lambda *s: torch.randn(*s, dtype=torch.bfloat16) * 1.6)(D, Hq * Dh) * (D ** -0.5)),
            "wo": _w((lambda *s: torch.randn(*s, dtype=torch.bfloat16) * 0.2)(Hq * Dh, D) * ((Hq * Dh) ** -0.5)),
        }
    _A_in = _A_setup()

    def _B_setup():
        B, Sq, D = 1, 1, 448
        Hq, Hkv, Sk, Dh = 16, 8, 8192, 256
        assert Hq % Hkv == 0, (Hq, Hkv)
        return {
            "x": _w((lambda *s: torch.randn(*s, dtype=torch.bfloat16) * 0.8)(B, Sq, D)),
            "k_cache": _w((lambda *s: torch.randn(*s, dtype=torch.bfloat16) * 1.6)(B, Hkv, Sk, Dh)),
            "v_cache": _w((lambda *s: torch.randn(*s, dtype=torch.bfloat16) * 0.2)(B, Hkv, Sk, Dh)),
            "wq": _w((lambda *s: torch.randn(*s, dtype=torch.bfloat16) * 1.6)(D, Hq * Dh) * (D ** -0.5)),
            "wo": _w((lambda *s: torch.randn(*s, dtype=torch.bfloat16) * 0.2)(Hq * Dh, D) * ((Hq * Dh) ** -0.5)),
        }
    _B_in = _B_setup()

    return {
        "A_x": _A_in["x"],
        "A_k_cache": _A_in["k_cache"],
        "A_v_cache": _A_in["v_cache"],
        "A_wq": _A_in["wq"],
        "A_wo": _A_in["wo"],
        "B_x": _B_in["x"],
        "B_k_cache": _B_in["k_cache"],
        "B_v_cache": _B_in["v_cache"],
        "B_wq": _B_in["wq"],
        "B_wo": _B_in["wo"],
    }

def reference(A_x, A_k_cache, A_v_cache, A_wq, A_wo, B_x, B_k_cache, B_v_cache, B_wq, B_wo):
    def _A_ref(x, k_cache, v_cache, wq, wo):
        B, Sq, D = x.shape
        Hq, Dh = 16, 256
        Hkv = k_cache.shape[1]
        rep = Hq // Hkv
        q = (lambda x, *d: x.permute(*d))((x @ wq).reshape(B, Sq, Hq, Dh), 0, 2, 1, 3)
        k = (lambda x, n, axis: torch.repeat_interleave(x, n, dim=axis))(k_cache, rep, axis=1)
        v = (lambda x, n, axis: torch.repeat_interleave(x, n, dim=axis))(v_cache, rep, axis=1)
        scores = torch.einsum("bhqd,bhkd->bhqk", q, k) * (Dh ** -0.5)
        p = _softmax(scores, axis=-1)
        o = torch.einsum("bhqk,bhkd->bhqd", p, v)
        return (lambda x, *d: x.permute(*d))(o, 0, 2, 1, 3).reshape(B, Sq, Hq * Dh) @ wo

    def _B_ref(x, k_cache, v_cache, wq, wo):
        B, Sq, D = x.shape
        Hq, Dh = 16, 256
        Hkv, Sk = k_cache.shape[1], k_cache.shape[2]
        W = min(4096, max(256, Sk // 4))
        rep = Hq // Hkv
        q = (lambda x, *d: x.permute(*d))((x @ wq).reshape(B, Sq, Hq, Dh), 0, 2, 1, 3)
        k = (lambda x, n, axis: torch.repeat_interleave(x, n, dim=axis))(k_cache[:, :, Sk - W:, :], rep, axis=1)
        v = (lambda x, n, axis: torch.repeat_interleave(x, n, dim=axis))(v_cache[:, :, Sk - W:, :], rep, axis=1)
        scores = torch.einsum("bhqd,bhkd->bhqk", q, k) * (Dh ** -0.5)
        p = _softmax(scores, axis=-1)
        o = torch.einsum("bhqk,bhkd->bhqd", p, v)
        return (lambda x, *d: x.permute(*d))(o, 0, 2, 1, 3).reshape(B, Sq, Hq * Dh) @ wo

    a = _A_ref(A_x, A_k_cache, A_v_cache, A_wq, A_wo)
    b = _B_ref(B_x, B_k_cache, B_v_cache, B_wq, B_wo)
    return torch.concatenate([a, b], axis=-1)
```

```python
import sys, math
KN = "concat_heads__gqa_block_cached__sliding_block_cached__decode_kernel"
HDR = open("concat_heads__gqa_block_cached__sliding_block_cached__decode.s.ref").read().split("; Override")[0]

X1 = 0x1000; X2 = 0x10000; X3 = 0x20000; X4 = 0x400000
STAMP = 0x8000000
L_OP = 0; L_P = 0x4000; L_QP = 0x5000; L_C = 0x5800; L_OF = 0x5840; L_FL = 0x58C0
LDS_BYTES = 0x5900
SPIN = 20000

def gen(name, stamps=False, ld=" nt", wld=" nt"):
    L = []
    def a(s): L.append("  " + s)
    def lab(s): L.append(s + ":")
    def nop(n): a(f"s_nop {n-1}")
    nstamp = [0]
    def stamp(k):
        if stamps: a(f"s_memrealtime s[{70+2*k}:{71+2*k}]")
    L.append(HDR.rstrip())
    L.append(f"; @launch grid=(256,1,1) block=(512,1,1) lds={LDS_BYTES}")
    L.append('.amdgcn_target "amdgcn-amd-amdhsa--gfx950"')
    L.append(".text"); L.append(f".globl {KN}"); L.append(".p2align 8"); L.append(f".type {KN},@function"); lab(KN)
    a("s_cmp_ge_u32 s2, 256"); a("s_cbranch_scc1 L_end")
    stamp(0)
    a("s_load_dwordx16 s[4:19], s[0:1], 0")
    a("s_load_dwordx8 s[20:27], s[0:1], 64")
    a("s_load_dwordx2 s[28:29], s[0:1], 96")
    a("v_lshrrev_b32 v1, 6, v0")
    a("v_and_b32 v2, 63, v0")
    a("s_and_b32 s31, s2, 7")
    a("v_readfirstlane_b32 s30, v1")
    a("s_lshr_b32 s32, s2, 3")
    a("v_lshrrev_b32 v3, 4, v2")
    a("v_and_b32 v4, 15, v2")
    a("s_and_b32 s33, s30, 3")
    a("s_lshl_b32 s57, s31, 22")
    a("s_lshl_b32 s34, s32, 17"); a("s_add_u32 s34, s34, s57"); a("s_lshl_b32 s58, s33, 15"); a("s_add_u32 s34, s34, s58")
    a("s_lshl_b32 s35, s32, 15"); a("s_add_u32 s35, s35, s57"); a("s_lshl_b32 s58, s33, 13"); a("s_add_u32 s35, s35, s58"); a("s_add_u32 s35, s35, 0x300000")
    a("s_mov_b32 s38, 0x2000000"); a("s_mov_b32 s39, 0x20000"); a("s_mov_b32 s42, 0x2000000"); a("s_mov_b32 s43, 0x20000")
    a("s_mov_b32 s46, 3670016"); a("s_mov_b32 s47, 0x20000")
    a("s_mov_b32 s54, 0x10000000"); a("s_mov_b32 s55, 0x20000")
    a("s_cmp_ge_u32 s30, 4"); a("s_cbranch_scc1 L_vwave")

    KB = 96
    a("s_setprio 2")
    a("v_bfe_u32 v5, v2, 2, 2")
    a("v_and_b32 v6, 3, v2")
    a("v_lshlrev_b32 v7, 6, v3")
    a("v_lshl_add_u32 v7, v6, 4, v7")
    a("v_lshl_add_u32 v7, v5, 9, v7")
    a("s_waitcnt lgkmcnt(0)")
    a("s_mov_b32 s36, s6"); a("s_mov_b32 s37, s7"); a("s_mov_b32 s40, s16"); a("s_mov_b32 s41, s17")
    a("s_load_dword s56, s[28:29], 0")
    a("s_mov_b32 s52, s28"); a("s_mov_b32 s53, s29")
    reg = KB
    cnt = 0
    for br, ngrp, srd, so in ((0, 8, 36, 34), (1, 2, 40, 35)):
        for n in range(ngrp):
            if n: a(f"s_add_u32 s{so}, s{so}, 4096")
            for t in range(2):
                for j in range(2):
                    a(f"buffer_load_dwordx4 v[{reg}:{reg+3}], v7, s[{srd}:{srd+3}], s{so} offen offset:{t*2048+j*256}{ld}"); reg += 4
                    cnt += 1
            if cnt == 8: a("s_barrier")
    stamp(1)
    a("v_bfe_u32 v8, v2, 2, 1")
    a("v_lshlrev_b32 v8, 10, v8")
    a("v_lshl_add_u32 v8, v3, 7, v8")
    a("v_lshl_add_u32 v8, v6, 5, v8")
    a("s_lshl_b32 s57, s31, 12"); a(f"s_add_u32 s58, s57, {X1}")
    a("s_waitcnt lgkmcnt(0)")
    a("s_mul_i32 s56, s56, 0x9E3779B1"); a("s_add_u32 s56, s56, 0x7F4A7C15")
    a(f"s_mov_b32 s59, {SPIN}")
    QG = 16
    lab("L_qpoll")
    for br in range(2):
        for j in range(2):
            for e in range(2):
                r = QG + ((br * 2 + j) * 2 + e) * 4
                a(f"buffer_load_dwordx4 v[{r}:{r+3}], v8, s[52:55], s58 offen offset:{br*2048+j*512+e*16} sc1")
    a("s_waitcnt vmcnt(0)")
    tags = [QG + k * 4 + o for k in range(8) for o in (1, 3)]
    def tagcheck(tags, t0, t1, again):
        for op, t in (("min", t0), ("max", t1)):
            a(f"v_{op}_u32 v{t}, v{tags[0]}, v{tags[1]}")
            for k in range(2, len(tags), 2):
                a(f"v_{op}3_u32 v{t}, v{t}, v{tags[k]}, v{tags[k+1]}")
        a(f"v_cmp_ne_u32 vcc, s56, v{t0}")
        a(f"v_cmp_ne_u32 s[60:61], s56, v{t1}")
        a("s_or_b64 vcc, vcc, s[60:61]")
        a("s_sub_u32 s59, s59, 1")
        a(f"s_cbranch_scc1 {again}_done")
        a(f"s_cbranch_vccnz {again}")
        lab(f"{again}_done")
    tagcheck(tags, 10, 11, "L_qpoll")
    stamp(2)
    FB = 48
    a("s_mov_b32 s60, 0x00ff00ff"); a("s_mov_b32 s61, 0x00ff00ff"); a("s_mov_b32 s62, 0xff00ff00"); a("s_mov_b32 s63, 0xff00ff00")
    for br in range(2):
        for j in range(2):
            for t in range(2):
                for k in range(4):
                    src = QG + ((br * 2 + j) * 2 + (k >> 1)) * 4 + (k & 1) * 2
                    a(f"v_cndmask_b32 v{FB + ((br*2+j)*2+t)*4 + k}, 0, v{src}, s[{60+2*t}:{61+2*t}]")
    nop(2)
    DB = 8
    reg = KB
    order = []
    for br, ngrp in ((0, 8), (1, 2)):
        for n in range(ngrp):
            d = DB + (br * 8 + n) * 4
            first = True
            for t in range(2):
                for j in range(2):
                    f = FB + ((br * 2 + j) * 2 + t) * 4
                    c = "0" if first else f"v[{d}:{d+3}]"
                    a(f"v_mfma_f32_16x16x32_bf16 v[{d}:{d+3}], v[{f}:{f+3}], v[{reg}:{reg+3}], {c}")
                    first = False; reg += 4
    nop(8)
    SB = 80
    for k in range(4):
        for n in range(10):
            d = DB + n * 4
            if k == 0: a(f"v_mov_b32_dpp v{SB+n}, v{d} quad_perm:[0,0,0,0] row_mask:0xf bank_mask:0xf")
            else: a(f"v_add_f32_dpp v{SB+n}, v{d+k}, v{SB+n} quad_perm:[{k},{k},{k},{k}] row_mask:0xf bank_mask:0xf")
    a(f"v_max3_f32 v8, v{SB}, v{SB+1}, v{SB+2}"); a(f"v_max_f32 v9, v{SB+8}, v{SB+9}")
    a(f"v_max3_f32 v8, v8, v{SB+3}, v{SB+4}"); a(f"v_max3_f32 v8, v8, v{SB+5}, v{SB+6}"); a(f"v_max_f32 v8, v8, v{SB+7}")
    def allred(op, regs, rors, tmp, s16=False):
        for r in rors:
            nop(2)
            for x in regs: a(f"v_{op}_f32_dpp v{x}, v{x}, v{x} row_ror:{r} row_mask:0xf bank_mask:0xf")
        for sw in ((16, 32) if s16 else (32,)):
            for x, t in zip(regs, tmp): a(f"v_mov_b32 v{t}, v{x}")
            nop(2)
            for x, t in zip(regs, tmp): a(f"v_permlane{sw}_swap_b32 v{x}, v{t}")
            nop(1)
            for x, t in zip(regs, tmp): a(f"v_{op}_f32 v{x}, v{x}, v{t}")
    allred("max", [8, 9], [4, 8], [10, 11])
    c = math.log2(math.e) / 16.0
    import struct
    cb = struct.unpack("<I", struct.pack("<f", c))[0]
    a(f"s_mov_b32 s60, {cb:#x}")
    a("v_mul_f32 v8, s60, v8"); a("v_mul_f32 v9, s60, v9")
    for n in range(10):
        a(f"v_fma_f32 v{SB+n}, v{SB+n}, s60, -v{8 if n < 8 else 9}")
    for n in range(10):
        a(f"v_exp_f32 v{SB+n}, v{SB+n}")
    nop(1)
    for n in range(10):
        a(f"v_cvt_pk_bf16_f32 v{16+n}, v{SB+n}, v{SB+n}")
    a("v_bfe_u32 v26, v2, 2, 3")
    a("v_lshrrev_b32 v27, 5, v2")
    a(f"s_lshl_b32 s61, s33, 10"); a(f"s_add_u32 s61, s61, {L_P}")
    a("v_lshlrev_b32 v28, 2, v27"); a("v_lshl_add_u32 v28, v26, 3, v28")
    a("v_lshl_add_u32 v29, v28, 3, s61")
    a("v_lshl_add_u32 v30, v28, 1, s61")
    a("s_mov_b32 s62, 0x11111111"); a("s_mov_b32 s63, 0x11111111")
    a("s_mov_b64 exec, s[62:63]")
    a("ds_write_b128 v29, v[16:19]"); a("ds_write_b128 v29, v[20:23] offset:16"); a("ds_write_b64 v30, v[24:25] offset:512")
    a("s_mov_b64 exec, -1")
    a(f"v_add_f32 v12, v{SB}, v{SB+1}"); a(f"v_add_f32 v13, v{SB+8}, v{SB+9}")
    for n in range(2, 8): a(f"v_add_f32 v12, v12, v{SB+n}")
    a("s_waitcnt lgkmcnt(0)")
    a(f"s_lshl_b32 s61, s33, 2"); a(f"s_add_u32 s61, s61, {L_FL+4}")
    a("v_mov_b32 v31, s61"); a("v_mov_b32 v32, 1")
    a("ds_write_b32 v31, v32")
    allred("add", [12, 13], [4, 8], [10, 11])
    a("v_log_f32 v12, v12"); a("v_log_f32 v13, v13")
    nop(1)
    a("v_add_f32 v16, v12, v8"); a("v_mov_b32 v17, s56"); a("v_add_f32 v18, v13, v9"); a("v_mov_b32 v19, s56")
    a("s_lshl_b32 s61, s32, 2"); a("s_add_u32 s61, s61, s33"); a("s_lshl_b32 s61, s61, 5"); a(f"s_add_u32 s58, s57, {X2}"); a("s_add_u32 s61, s61, s58")
    a("v_and_b32 v20, 16, v2")
    a("s_mov_b32 s62, 0x00010001"); a("s_mov_b32 s63, 0")
    a("s_mov_b64 exec, s[62:63]")
    a("buffer_store_dwordx4 v[16:19], v20, s[52:55], s61 offen sc1")
    a("s_mov_b64 exec, -1")
    stamp(3)
    a("v_lshl_add_u32 v21, v27, 4, v4"); a("v_lshl_add_u32 v21, v21, 5, v20")
    a(f"s_mov_b32 s59, {SPIN}")
    lab("L_lpoll")
    for n in range(4):
        a(f"buffer_load_dwordx4 v[{32+4*n}:{35+4*n}], v21, s[52:55], s58 offen offset:{n*1024} sc1")
    a("s_waitcnt vmcnt(0)")
    tagcheck([32 + 4 * n + o for n in range(4) for o in (1, 3)], 10, 11, "L_lpoll")
    stamp(4)
    a("s_setprio 0")
    a("s_cmp_ge_u32 s32, 16"); a("s_cselect_b32 s44, s22, s12"); a("s_cselect_b32 s45, s23, s13")
    a("s_and_b32 s61, s32, 15"); a("s_lshl_b32 s61, s61, 5"); a("s_lshl_b32 s62, s31, 9"); a("s_add_u32 s61, s61, s62"); a("s_mul_i32 s61, s61, 896")
    a("s_mul_i32 s62, s33, 224"); a("s_add_u32 s61, s61, s62"); a("s_add_u32 s62, s61, 3584")
    a("v_mul_u32_u24 v22, 7168, v3"); a("v_lshl_add_u32 v22, v4, 4, v22")
    a("v_cmp_lt_u32 vcc, 13, v4"); a("v_mov_b32 v23, 0x40000000"); nop(1); a("v_cndmask_b32 v22, v22, v23, vcc")
    WB = 96
    for t in range(8):
        a(f"buffer_load_dwordx4 v[{WB+4*t}:{WB+4*t+3}], v22, s[44:47], s{61 if t < 4 else 62} offen offset:{(t&3)*896}{wld}")
    a("v_max3_f32 v12, v32, v36, v40"); a("v_max3_f32 v13, v34, v38, v42"); a("v_max_f32 v12, v12, v44"); a("v_max_f32 v13, v13, v46")
    allred("max", [12, 13], [1, 2, 4, 8], [10, 11])
    for n in range(4):
        a(f"v_sub_f32 v{32+4*n}, v{32+4*n}, v12"); a(f"v_sub_f32 v{34+4*n}, v{34+4*n}, v13")
    for n in range(4):
        a(f"v_exp_f32 v{32+4*n}, v{32+4*n}"); a(f"v_exp_f32 v{34+4*n}, v{34+4*n}")
    nop(1)
    a("v_add_f32 v14, v32, v36"); a("v_add_f32 v15, v34, v38"); a("v_add_f32 v14, v14, v40"); a("v_add_f32 v15, v15, v42"); a("v_add_f32 v14, v14, v44"); a("v_add_f32 v15, v15, v46")
    allred("add", [14, 15], [1, 2, 4, 8], [10, 11])
    a("v_sub_f32 v8, v8, v12"); a("v_sub_f32 v9, v9, v13")
    a("v_exp_f32 v8, v8"); a("v_exp_f32 v9, v9"); a("v_rcp_f32 v14, v14"); a("v_rcp_f32 v15, v15")
    nop(1)
    a("v_mul_f32 v8, v8, v14"); a("v_mul_f32 v9, v9, v15")
    a(f"s_lshl_b32 s61, s33, 2"); a(f"s_add_u32 s61, s61, {L_C}")
    a("v_add_u32 v20, s61, v20")
    a("s_mov_b32 s62, 0x00010001"); a("s_mov_b32 s63, 0")
    a("s_mov_b64 exec, s[62:63]")
    a("ds_write_b32 v20, v8"); a("ds_write_b32 v20, v9 offset:32")
    a("s_mov_b64 exec, -1")
    a("s_branch L_join")

    lab("L_vwave")
    a("s_setprio 3")
    a(f"v_mov_b32 v5, {L_FL}"); a("v_mov_b32 v8, 0"); a("v_mov_b32 v9, 0"); a("v_mov_b32 v10, 0"); a("v_mov_b32 v11, 0")
    a("ds_write_b128 v5, v[8:11]"); a("ds_write_b128 v5, v[8:11] offset:16")
    a("v_lshrrev_b32 v6, 2, v2"); a("v_and_b32 v7, 3, v2")
    a("v_lshlrev_b32 v12, 13, v6"); a("v_lshl_add_u32 v12, v7, 4, v12")
    a("v_lshlrev_b32 v13, 1, v6")
    a("s_and_b32 s61, s32, 15"); a("s_lshl_b32 s61, s61, 6"); a("s_lshl_b32 s62, s31, 10"); a("s_add_u32 s61, s61, s62")
    a(f"s_mul_i32 s62, s33, {112*8192}"); a("s_add_u32 s61, s61, s62")
    a("s_mul_i32 s62, s33, 224")
    a("s_mov_b32 s50, 896"); a("s_mov_b32 s51, 0x20000")
    a("s_waitcnt lgkmcnt(0)")
    a("s_cmp_ge_u32 s32, 16")
    a("s_cselect_b32 s44, s20, s10"); a("s_cselect_b32 s45, s21, s11"); a("s_cselect_b32 s48, s14, s4"); a("s_cselect_b32 s49, s15, s5")
    WQ = 32
    for n in range(7):
        a(f"buffer_load_dwordx4 v[{WQ+4*n}:{WQ+4*n+3}], v12, s[44:47], s61 offen{wld}")
        if n < 6: a("s_add_u32 s61, s61, 131072")
    for n in range(7):
        a(f"buffer_load_ushort v{24+n}, v13, s[48:51], s62 offen offset:{n*32}")
    a("s_load_dword s56, s[28:29], 0")
    a("s_mov_b32 s36, s8"); a("s_mov_b32 s37, s9"); a("s_mov_b32 s40, s18"); a("s_mov_b32 s41, s19")
    a("s_mov_b32 s52, s28"); a("s_mov_b32 s53, s29")
    a("s_barrier")
    a("s_setprio 1")
    a("v_lshlrev_b32 v14, 9, v3"); a("v_lshl_add_u32 v14, v4, 4, v14")
    a("s_waitcnt vmcnt(0) lgkmcnt(0)")
    a("s_mul_i32 s56, s56, 0x9E3779B1"); a("s_add_u32 s56, s56, 0x7F4A7C15")
    stamp(1)
    AC = 16
    for n in range(7):
        a(f"v_lshlrev_b32 v{24+n}, 16, v{24+n}")
    for n in range(7):
        for k in range(4):
            w = WQ + 4 * n + k
            a(f"v_lshlrev_b32 v8, 16, v{w}"); a(f"v_and_b32 v9, 0xffff0000, v{w}")
            if n == 0:
                a(f"v_mul_f32 v{AC+2*k}, v8, v24"); a(f"v_mul_f32 v{AC+2*k+1}, v9, v24")
            else:
                a(f"v_fmac_f32 v{AC+2*k}, v8, v{24+n}"); a(f"v_fmac_f32 v{AC+2*k+1}, v9, v{24+n}")
    for r in (4, 8):
        nop(2)
        for k in range(8): a(f"v_add_f32_dpp v{AC+k}, v{AC+k}, v{AC+k} row_ror:{r} row_mask:0xf bank_mask:0xf")
    a("s_lshl_b32 s61, s33, 9"); a(f"s_add_u32 s61, s61, {L_QP}")
    a("v_lshlrev_b32 v8, 7, v3"); a("v_lshl_add_u32 v8, v7, 5, v8"); a("v_add_u32 v8, s61, v8")
    a("s_mov_b32 s62, 0x000f000f"); a("s_mov_b32 s63, 0x000f000f")
    a("s_mov_b64 exec, s[62:63]")
    a(f"ds_write_b128 v8, v[{AC}:{AC+3}]"); a(f"ds_write_b128 v8, v[{AC+4}:{AC+7}] offset:16")
    a("s_mov_b64 exec, 1")
    a("v_mov_b32 v9, 1")
    a("s_waitcnt lgkmcnt(0)")
    a("ds_add_rtn_u32 v10, v5, v9")
    a("s_waitcnt lgkmcnt(0)")
    a("s_mov_b64 exec, -1")
    a("v_readfirstlane_b32 s61, v10")
    a("s_cmp_lg_u32 s61, 3"); a("s_cbranch_scc1 L_vload")
    a("v_lshlrev_b32 v8, 9, v3"); a("v_lshl_add_u32 v8, v4, 3, v8")
    for k in range(4): a(f"ds_read_b64 v[{16+2*k}:{17+2*k}], v8 offset:{L_QP + k*128}")
    a("s_waitcnt lgkmcnt(0)")
    a("v_add_f32 v16, v16, v18"); a("v_add_f32 v17, v17, v19"); a("v_add_f32 v20, v20, v22"); a("v_add_f32 v21, v21, v23")
    a("v_add_f32 v16, v16, v20"); a("v_add_f32 v17, v17, v21")
    allred("add", [16, 17], [], [10, 11], s16=True)
    a("v_cvt_pk_bf16_f32 v16, v16, v17"); a("v_mov_b32 v17, s56")
    a("s_lshl_b32 s61, s31, 12"); a("s_lshl_b32 s62, s32, 7"); a("s_add_u32 s61, s61, s62"); a(f"s_add_u32 s61, s61, {X1}")
    a("v_lshlrev_b32 v8, 3, v4")
    a("s_mov_b32 s62, 0xffff"); a("s_mov_b32 s63, 0"); a("s_mov_b64 exec, s[62:63]")
    a("buffer_store_dwordx2 v[16:17], v8, s[52:55], s61 offen sc1")
    a("s_mov_b64 exec, -1")
    lab("L_vload")
    stamp(2)
    VB = 96
    reg = VB
    for br, nblk, srd, so in ((0, 16, 36, 34), (1, 4, 40, 35)):
        for b in range(nblk):
            if b and b % 2 == 0: a(f"s_add_u32 s{so}, s{so}, 4096")
            for hf in range(2):
                a(f"buffer_load_dwordx4 v[{reg}:{reg+3}], v14, s[{srd}:{srd+3}], s{so} offen offset:{(b&1)*2048+hf*256}{ld}"); reg += 4
    stamp(3)
    def masks(base):
        a("v_and_b32 v12, 1, v2"); a("v_lshlrev_b32 v12, 4, v12"); a("v_mov_b32 v13, 0xffff"); a("v_lshlrev_b32 v12, v12, v13")
        a("v_bfe_u32 v13, v2, 1, 2")
        for j in range(4):
            a(f"v_cmp_eq_u32 vcc, {j}, v13"); nop(2); a(f"v_cndmask_b32 v{base+j}, 0, v12, vcc")
    masks(8)
    a(f"s_lshl_b32 s61, s33, 2"); a(f"s_add_u32 s61, s61, {L_FL+4}"); a("v_mov_b32 v15, s61")
    a(f"s_mov_b32 s59, {SPIN*100}")
    lab("L_pwait")
    a("ds_read_b32 v16, v15"); a("s_waitcnt lgkmcnt(0)"); a("v_readfirstlane_b32 s61, v16")
    a("s_sub_u32 s59, s59, 1"); a("s_cbranch_scc1 L_pwait_done")
    a("s_cmp_eq_u32 s61, 0"); a("s_cbranch_scc1 L_pwait")
    lab("L_pwait_done")
    a("v_bfe_u32 v16, v2, 3, 1"); a("v_lshl_add_u32 v16, v16, 2, v3")
    a(f"s_lshl_b32 s61, s33, 10"); a(f"s_add_u32 s61, s61, {L_P}")
    a("v_lshl_add_u32 v17, v16, 6, s61"); a("v_lshl_add_u32 v18, v16, 4, s61")
    PB_ = 32
    for k in range(4): a(f"ds_read_b128 v[{PB_+4*k}:{PB_+4*k+3}], v17 offset:{16*k}")
    a(f"ds_read_b128 v[{PB_+16}:{PB_+19}], v18 offset:512")
    a("s_waitcnt lgkmcnt(0)")
    stamp(4)
    OD = 64; AB = 52
    reg = VB; done = 0; step = 0
    for br, nblk in ((0, 16), (1, 4)):
        for b in range(nblk):
            n = b >> 1; t = b & 1
            p = PB_ + (t * 8 + n if br == 0 else 16 + t * 2 + n)
            ab = AB + (step & 1) * 4
            for j in range(4): a(f"v_and_b32 v{ab+j}, v{p}, v{8+j}")
            done += 2
            a(f"s_waitcnt vmcnt({40-done})")
            a("s_nop 0")
            for hf in range(2):
                d = OD + (br * 2 + hf) * 4
                c = "0" if b == 0 else f"v[{d}:{d+3}]"
                a(f"v_mfma_f32_16x16x32_bf16 v[{d}:{d+3}], v[{ab}:{ab+3}], v[{reg}:{reg+3}], {c}"); reg += 4
            step += 1
    a("s_lshl_b32 s61, s33, 12")
    a("v_lshl_add_u32 v16, v2, 4, s61")
    nop(8)
    for k in range(4): a(f"ds_write_b128 v16, v[{OD+4*k}:{OD+4*k+3}] offset:{L_OP + k*1024}")

    lab("L_join")
    stamp(5)
    a("v_lshlrev_b32 v16, 3, v0")
    a("s_lshr_b32 s61, s30, 2"); a("s_lshl_b32 s61, s61, 1"); a("s_and_b32 s62, s30, 1"); a("s_add_u32 s61, s61, s62")
    a("s_lshl_b32 s63, s61, 4"); a(f"s_add_u32 s63, s63, {L_C}"); a("v_mov_b32 v17, s63")
    a("s_lshl_b32 s61, s61, 3"); a("s_and_b32 s62, s30, 2"); a("s_lshl_b32 s62, s62, 1"); a("s_add_u32 s61, s61, s62")
    a("s_lshl_b32 s62, s31, 5"); a("s_add_u32 s61, s61, s62"); a("s_lshl_b32 s61, s61, 5"); a("s_add_u32 s61, s61, s32"); a("s_lshl_b32 s61, s61, 8"); a(f"s_add_u32 s64, s61, {X3}")
    a("v_bfe_u32 v18, v2, 3, 2"); a("v_lshlrev_b32 v18, 13, v18")
    a("v_lshrrev_b32 v19, 5, v2"); a("v_lshl_add_u32 v18, v19, 7, v18")
    a("v_and_b32 v19, 7, v2"); a("v_lshl_add_u32 v18, v19, 4, v18")
    a("s_add_u32 s62, s62, s32"); a("s_lshl_b32 s62, s62, 13"); a("s_lshl_b32 s61, s30, 5"); a("s_add_u32 s62, s62, s61"); a(f"s_add_u32 s65, s62, {X3}")
    a("v_lshrrev_b32 v19, 1, v2"); a("v_lshlrev_b32 v19, 8, v19"); a("v_and_b32 v20, 1, v2"); a("v_lshl_add_u32 v19, v20, 4, v19")
    a("s_lshl_b32 s61, s33, 5"); a("s_lshr_b32 s62, s30, 2"); a("s_lshl_b32 s62, s62, 4"); a("s_add_u32 s61, s61, s62"); a(f"s_add_u32 s61, s61, {L_OF}")
    a("v_lshrrev_b32 v21, 5, v2"); a("v_lshl_add_u32 v21, v20, 1, v21"); a("v_lshl_add_u32 v21, v21, 2, s61")
    a("v_mov_b32 v41, s56"); a("v_mov_b32 v43, s56")
    a("s_waitcnt lgkmcnt(0)")
    a("s_barrier")
    for k in range(4): a(f"ds_read_b64 v[{24+2*k}:{25+2*k}], v16 offset:{L_OP + k*4096}")
    a("ds_read_b128 v[32:35], v17")
    a("s_waitcnt lgkmcnt(0)")
    a("v_mul_f32 v40, v24, v32"); a("v_mul_f32 v42, v25, v32")
    for k in range(1, 4):
        a(f"v_fmac_f32 v40, v{24+2*k}, v{32+k}"); a(f"v_fmac_f32 v42, v{25+2*k}, v{32+k}")
    a("buffer_store_dwordx4 v[40:43], v18, s[52:55], s64 offen sc1")
    stamp(6)
    a(f"s_mov_b32 s59, {SPIN}")
    lab("L_opoll")
    a("buffer_load_dwordx4 v[24:27], v19, s[52:55], s65 offen sc1")
    a("s_waitcnt vmcnt(0)")
    a("v_cmp_ne_u32 vcc, s56, v25"); a("v_cmp_ne_u32 s[60:61], s56, v27"); a("s_or_b64 vcc, vcc, s[60:61]")
    a("s_sub_u32 s59, s59, 1"); a("s_cbranch_scc1 L_opoll_done"); a("s_cbranch_vccnz L_opoll")
    lab("L_opoll_done")
    stamp(7)
    a("v_permlane32_swap_b32 v24, v26"); nop(1)
    a("v_add_f32 v24, v24, v26")
    a("v_mov_b32 v26, v24"); nop(2)
    a("v_permlane16_swap_b32 v24, v26"); nop(1)
    a("v_add_f32 v24, v24, v26"); nop(2)
    a("v_add_f32_dpp v24, v24, v24 row_ror:8 row_mask:0xf bank_mask:0xf"); nop(2)
    a("v_add_f32_dpp v24, v24, v24 row_ror:4 row_mask:0xf bank_mask:0xf"); nop(2)
    a("v_add_f32_dpp v24, v24, v24 row_ror:2 row_mask:0xf bank_mask:0xf")
    a("v_cvt_pk_bf16_f32 v24, v24, v24")
    a("s_mov_b32 s62, 3"); a("s_mov_b32 s63, 3"); a("s_mov_b64 exec, s[62:63]")
    a("ds_write_b32 v21, v24")
    a("s_mov_b64 exec, -1")
    a("s_cmp_ge_u32 s30, 4"); a("s_cbranch_scc1 L_vtail")
    masks(8)
    a(f"v_lshlrev_b32 v16, 5, v3")
    a("s_lshr_b32 s61, s32, 4"); a("s_lshl_b32 s61, s61, 7"); a("s_lshl_b32 s62, s31, 4"); a("s_add_u32 s61, s61, s62"); a("s_and_b32 s62, s32, 15"); a("s_add_u32 s61, s61, s62")
    a("s_mul_i32 s61, s61, 3584"); a("s_mul_i32 s62, s33, 896"); a("s_add_u32 s61, s61, s62"); a(f"s_add_u32 s64, s61, {X4}")
    a("v_lshlrev_b32 v17, 6, v4"); a("v_and_b32 v18, 1, v3"); a("v_lshl_add_u32 v17, v18, 5, v17"); a("v_lshrrev_b32 v18, 1, v3"); a("v_lshl_add_u32 v17, v18, 4, v17")
    a("s_waitcnt lgkmcnt(0)")
    a("s_barrier")
    a(f"ds_read_b128 v[24:27], v16 offset:{L_OF}"); a(f"ds_read_b128 v[28:31], v16 offset:{L_OF+16}")
    a("s_waitcnt lgkmcnt(0)")
    for t in range(8):
        for j in range(4): a(f"v_and_b32 v{48+4*t+j}, v{24+t}, v{8+j}")
    nop(2)
    for t in range(8):
        c = "0" if t == 0 else "v[32:35]"
        a(f"v_mfma_f32_16x16x32_bf16 v[32:35], v[{48+4*t}:{51+4*t}], v[{WB+4*t}:{WB+4*t+3}], {c}")
    a("s_mov_b32 s62, 0"); a("s_mov_b32 s63, -1")
    a("s_mov_b32 s60, 0x3fff3fff"); a("s_mov_b32 s61, 0x3fff3fff")
    nop(5)
    a("v_cndmask_b32 v40, v32, v34, s[62:63]"); a("v_cndmask_b32 v42, v33, v35, s[62:63]")
    a("s_mov_b64 exec, s[60:61]")
    a("buffer_store_dwordx4 v[40:43], v17, s[52:55], s64 offen sc1")
    a("s_mov_b64 exec, -1")
    stamp(8)
    a("s_branch L_fin")
    lab("L_vtail")
    a("s_waitcnt lgkmcnt(0)")
    a("s_barrier")
    a("s_cmp_lg_u32 s30, 4"); a("s_cbranch_scc1 L_fin")
    a("s_cmp_ge_u32 s2, 112"); a("s_cbranch_scc1 L_fin")
    a("s_lshr_b32 s61, s2, 4"); a("s_lshl_b32 s61, s61, 3"); a("s_add_u32 s61, s61, s31")
    a("s_and_b32 s62, s32, 1")
    a("s_lshl_b32 s63, s61, 1"); a("s_add_u32 s63, s63, s62")
    a("s_lshl_b32 s66, s63, 4")
    a("s_lshl_b32 s63, s63, 6")
    a("s_cmp_ge_u32 s61, 28"); a(f"s_cselect_b32 s62, {128*3584 - 3584}, 0"); a("s_add_u32 s63, s63, s62"); a(f"s_add_u32 s64, s63, {X4}")
    a("v_lshrrev_b32 v16, 2, v2"); a("v_mul_u32_u24 v16, 3584, v16"); a("v_and_b32 v17, 3, v2"); a("v_lshl_add_u32 v16, v17, 4, v16")
    a("v_lshrrev_b32 v18, 5, v2"); a("v_lshlrev_b32 v18, 1, v18"); a("v_lshl_add_u32 v18, v17, 2, v18")
    a("s_mov_b32 s48, s24"); a("s_mov_b32 s49, s25"); a("s_mov_b32 s50, 1792"); a("s_mov_b32 s51, 0x20000")
    a(f"s_mov_b32 s59, {SPIN}")
    lab("L_fpoll")
    a("s_mov_b32 s65, s64")
    for n in range(8):
        a(f"buffer_load_dwordx4 v[{32+4*n}:{35+4*n}], v16, s[52:55], s65 offen sc1")
        if n < 7: a(f"s_add_u32 s65, s65, {16*3584}")
    a("s_waitcnt vmcnt(0)")
    tagcheck([32 + 4 * n + o for n in range(8) for o in (1, 3)], 10, 11, "L_fpoll")
    stamp(8)
    for o in (0, 2):
        for n in range(0, 8, 2): a(f"v_add_f32 v{32+4*n+o}, v{32+4*n+o}, v{36+4*n+o}")
    for o in (0, 2):
        a(f"v_add_f32 v{32+o}, v{32+o}, v{40+o}"); a(f"v_add_f32 v{48+o}, v{48+o}, v{56+o}")
    a("v_add_f32 v24, v32, v48"); a("v_add_f32 v26, v34, v50"); nop(2)
    a("v_permlane32_swap_b32 v24, v26"); nop(1)
    a("v_add_f32 v24, v24, v26")
    a("v_mov_b32 v26, v24"); nop(2)
    a("v_permlane16_swap_b32 v24, v26"); nop(1)
    a("v_add_f32 v24, v24, v26"); nop(2)
    a("v_add_f32_dpp v24, v24, v24 row_ror:8 row_mask:0xf bank_mask:0xf"); nop(2)
    a("v_add_f32_dpp v24, v24, v24 row_ror:4 row_mask:0xf bank_mask:0xf")
    a("v_cvt_pk_bf16_f32 v24, v24, v24")
    a("s_mov_b32 s62, 15"); a("s_mov_b32 s63, 15"); a("s_mov_b64 exec, s[62:63]")
    a("buffer_store_short v24, v18, s[48:51], s66 offen")
    a("s_cmp_lg_u32 s2, 0"); a("s_cbranch_scc1 L_fin")
    a("s_mov_b64 exec, 1")
    a("v_mov_b32 v25, s56"); a("v_mov_b32 v26, 0")
    a("buffer_store_dword v25, v26, s[52:55], 0 offen sc1")
    lab("L_fin")
    if stamps:
        a("s_mov_b64 exec, -1")
        stamp(9)
        a("s_waitcnt lgkmcnt(0)")
        a("s_lshl_b32 s61, s2, 3"); a("s_add_u32 s61, s61, s30"); a("s_lshl_b32 s61, s61, 6"); a(f"s_add_u32 s61, s61, {STAMP}")
        for k in range(10): a(f"v_mov_b32 v{32+k}, s{70+2*k}")
        a("s_getreg_b32 s62, hwreg(HW_REG_XCC_ID)"); a("v_mov_b32 v42, s62"); a("v_mov_b32 v43, s59")
        a("v_mov_b32 v1, 0"); a("s_mov_b64 exec, 1")
        for k in range(3): a(f"buffer_store_dwordx4 v[{32+4*k}:{35+4*k}], v1, s[52:55], s61 offen offset:{16*k}")
    lab("L_end"); a("s_endpgm")
    L.append('.section .rodata,"a"'); L.append(".p2align 6"); L.append(f".amdhsa_kernel {KN}")
    for s in ("next_free_vgpr 256", "next_free_sgpr 96", "accum_offset 256", "group_segment_fixed_size 0", "kernarg_size 104", "user_sgpr_count 2", "user_sgpr_kernarg_segment_ptr 1", "system_sgpr_workgroup_id_x 1"):
        L.append("  .amdhsa_" + s)
    L.append(".end_amdhsa_kernel")
    open(name, "w").write("\n".join(L) + "\n")

if __name__ == "__main__":
    gen("k1.s"); gen("k1_st.s", stamps=True); gen("k1_def.s", ld="", wld="")
```

```python
import sys, math, struct
KN = "concat_heads__gqa_block_cached__sliding_block_cached__decode_kernel"
HDR = open("concat_heads__gqa_block_cached__sliding_block_cached__decode.s.ref").read().split("; Override")[0]

X0 = 0x1000; X2 = 0x2000; X1 = 0x10000; X3 = 0x40000; X4 = 0x140000
STAMP = 0x8000000
L_OP = 0; L_QP = 0; L_P = 0x4000; L_Q = 0x5000; L_C = 0x5800; L_FL = 0x5840; L_ML = 0x5900; L_AO = 0x6000
LDS_BYTES = 0x8000
SPIN = 20000
DPP = "row_mask:0xf bank_mask:0xf"

def gen(name, stamps=False, ld=" nt", wld=" nt", qsleep=4, osleep=4, othr=8, fsleep=1,
        nE=(10, 11, 11, 11), nE3=8, force=None, NK=8, NV=8, NW=0, p0=12, wo_at=20, trig=30, abl='', odelay=0, mul=0x9E3779B1, kvprio=(1, 1)):
    L = []
    def a(s): L.append("  " + s)
    def A(*ss):
        for s in ss: a(s)
    def lab(s): L.append(s + ":")
    def nop(n): a(f"s_nop {n-1}")
    def stamp(k):
        if stamps: a(f"s_memrealtime s[{72+2*k}:{73+2*k}]")
    def setexec(lo, hi): A(f"s_mov_b32 exec_lo, {lo:#x}", f"s_mov_b32 exec_hi, {hi:#x}")
    def allred(op, regs, dpps, tmp, swaps):
        for r in dpps:
            nop(2)
            for x in regs: a(f"v_{op}_f32_dpp v{x}, v{x}, v{x} {r} {DPP}")
        for sw in swaps:
            for x, t in zip(regs, tmp): a(f"v_mov_b32 v{t}, v{x}")
            nop(2)
            for x, t in zip(regs, tmp): a(f"v_permlane{sw}_swap_b32 v{x}, v{t}")
            nop(1)
            for x, t in zip(regs, tmp): a(f"v_{op}_f32 v{x}, v{x}, v{t}")
    def maketag():
        A("s_mul_i32 s56, s56, 0x9E3779B1", "s_add_u32 s56, s56, 0x7F4A7C15",
          "s_and_b32 s64, s56, 0xff", "s_bfe_u32 s65, s56, 0x80008", "s_bfe_u32 s66, s56, 0x80010", "s_lshr_b32 s67, s56, 24")
    def bytecheck(bases, t):
        first = True
        for b in bases:
            for k in range(4):
                if first: a(f"v_xor_b32 v{t}, s{64+k}, v{b+k}"); first = False
                else: a(f"v_bitop3_b32 v{t}, v{b+k}, s{64+k}, v{t} bitop3:0xbe")
        a(f"v_and_b32 v{t}, 0xff, v{t}")
    def pack(dst, src, m):
        for k in range(4): a(f"v_and_or_b32 v{dst+k}, v{src+k}, v{m}, s{64+k}")
    def redscat(g):
        A(f"v_permlane32_swap_b32 v{g}, v{g+1}", f"v_permlane32_swap_b32 v{g+2}, v{g+3}"); nop(1)
        A(f"v_add_f32 v{g}, v{g}, v{g+1}", f"v_add_f32 v{g+2}, v{g+2}, v{g+3}"); nop(2)
        a(f"v_permlane16_swap_b32 v{g}, v{g+2}"); nop(1)
        a(f"v_add_f32 v{g}, v{g}, v{g+2}")
        allred("add", [g], ["row_ror:8", "row_ror:4", "row_ror:2"], [], [])
    X1Q, X2Q = "quad_perm:[1,0,3,2]", "quad_perm:[2,3,0,1]"

    L.append(HDR.rstrip())
    L.append(f"; @launch grid=(256,1,1) block=(512,1,1) lds={LDS_BYTES}")
    L.append('.amdgcn_target "amdgcn-amd-amdhsa--gfx950"')
    L.append(".text"); L.append(f".globl {KN}"); L.append(".p2align 8"); L.append(f".type {KN},@function"); lab(KN)
    A("s_cmp_ge_u32 s2, 256", "s_cbranch_scc1 L_end")
    stamp(0)
    A("s_load_dwordx16 s[4:19], s[0:1], 0", "s_load_dwordx8 s[20:27], s[0:1], 64", "s_load_dwordx2 s[28:29], s[0:1], 96")
    A("v_lshrrev_b32 v1, 6, v0", "v_and_b32 v2, 63, v0", "s_and_b32 s31, s2, 7", "v_readfirstlane_b32 s30, v1", "s_lshr_b32 s32, s2, 3",
      "v_lshrrev_b32 v3, 4, v2", "v_and_b32 v4, 15, v2", "s_and_b32 s33, s30, 3")
    A("s_lshl_b32 s57, s31, 22", "s_lshl_b32 s58, s33, 11", "s_add_u32 s57, s57, s58",
      f"s_mul_i32 s58, s2, {mul:#x}", "s_lshr_b32 s58, s58, 7",
      "s_lshl_b32 s34, s32, 17", "s_add_u32 s34, s34, s57", "s_and_b32 s59, s58, 0x1e000", "s_add_u32 s34, s34, s59",
      "s_lshl_b32 s35, s32, 15", "s_add_u32 s35, s35, s57", "s_and_b32 s59, s58, 0x6000", "s_add_u32 s35, s35, s59", "s_add_u32 s35, s35, 0x300000")
    A("s_mov_b32 s38, 0x2000000", "s_mov_b32 s39, 0x20000", "s_mov_b32 s42, 0x2000000", "s_mov_b32 s43, 0x20000",
      "s_mov_b32 s54, 0x10000000", "s_mov_b32 s55, 0x20000")
    A("s_cmp_ge_u32 s30, 4", "s_cbranch_scc1 L_vwave")

    KB = 96
    a(f"s_setprio {kvprio[0]}")
    A("v_bfe_u32 v5, v2, 2, 2", "v_and_b32 v6, 3, v2", "v_lshlrev_b32 v7, 6, v3", "v_lshl_add_u32 v7, v6, 4, v7", "v_lshl_add_u32 v7, v5, 9, v7")
    a("s_waitcnt lgkmcnt(0)")
    A("s_mov_b32 s36, s6", "s_mov_b32 s37, s7", "s_mov_b32 s40, s16", "s_mov_b32 s41, s17")
    reg = KB; cnt = 0
    for br, npc, srd, so in ((0, 16, 36, 34), (1, 4, 40, 35)):
        for i in range(npc):
            a(f"s_xor_b32 s57, s{so}, {i << 13}")
            for j in range(2):
                if NK and cnt >= NK: a(f"s_waitcnt vmcnt({NK-1})")
                a(f"buffer_load_dwordx4 v[{reg}:{reg+3}], v7, s[{srd}:{srd+3}], s57 offen offset:{j*256}{ld}"); reg += 4; cnt += 1
            if cnt == 4: A("s_load_dword s56, s[28:29], 0", "s_mov_b32 s52, s28", "s_mov_b32 s53, s29", "s_barrier")
    a("s_barrier")
    stamp(1)
    A("v_bfe_u32 v8, v2, 2, 1", "v_lshlrev_b32 v8, 9, v8", "v_lshl_add_u32 v8, v3, 6, v8", "v_lshl_add_u32 v8, v6, 4, v8", f"v_mov_b32 v9, {L_FL+24}")
    A("v_lshlrev_b32 v12, 4, v2", "s_lshl_b32 s58, s31, 13", "s_lshr_b32 s61, s33, 1", "s_lshl_b32 s61, s61, 12", "s_add_u32 s58, s58, s61",
      "s_and_b32 s61, s33, 1", "s_lshl_b32 s61, s61, 10", "s_add_u32 s58, s58, s61", f"s_add_u32 s58, s58, {X1}",
      "s_lshl_b32 s61, s33, 9", f"s_add_u32 s61, s61, {L_Q}", "v_lshl_add_u32 v13, v2, 3, s61", "v_mov_b32 v14, 1",
      "s_getreg_b32 s68, hwreg(HW_REG_XCC_ID, 0, 4)")
    a("s_waitcnt lgkmcnt(0)")
    maketag()
    A(f"s_mov_b32 s59, {SPIN}", "s_branch L_qpoll1")
    lab("L_qpoll")
    a(f"s_sleep {qsleep}")
    lab("L_qpoll1")
    A("buffer_load_dwordx4 v[16:19], v12, s[52:55], s58 offen sc1", "buffer_load_dwordx4 v[20:23], v12, s[52:55], s58 offen offset:2048 sc1",
      "s_waitcnt vmcnt(0)")
    bytecheck([16, 20], 10)
    if 'q' not in abl:
        A("v_cmp_ne_u32 vcc, 0, v10", "s_sub_u32 s59, s59, 1", "s_cbranch_scc1 L_qpoll_done", "s_cbranch_vccnz L_qpoll")
    lab("L_qpoll_done")
    for k in range(8): a(f"v_and_b32 v{16+k}, 0xffffff00, v{16+k}")
    for k in range(4): a(f"v_add_f32 v{16+k}, v{16+k}, v{20+k}")
    A("v_cvt_pk_bf16_f32 v16, v16, v17", "v_cvt_pk_bf16_f32 v17, v18, v19", "ds_write_b64 v13, v[16:17]")
    A("s_mov_b64 exec, 1", "s_waitcnt lgkmcnt(0)", "ds_add_u32 v9, v14", "s_mov_b64 exec, -1", f"s_mov_b32 s59, {SPIN*100}")
    lab("L_qwait")
    A("ds_read_b32 v10, v9", "s_waitcnt lgkmcnt(0)", "v_readfirstlane_b32 s61, v10",
      "s_sub_u32 s59, s59, 1", "s_cbranch_scc1 L_qwait_done", "s_cmp_lt_u32 s61, 4", "s_cbranch_scc1 L_qwait")
    lab("L_qwait_done")
    QG = 16
    for br in range(2):
        for j in range(2):
            r = QG + (br * 2 + j) * 4
            a(f"ds_read_b128 v[{r}:{r+3}], v8 offset:{L_Q + br*1024 + j*256}")
    FB = 48
    A("s_mov_b32 s60, 0x00ff00ff", "s_mov_b32 s61, 0x00ff00ff", "s_mov_b32 s62, 0xff00ff00", "s_mov_b32 s63, 0xff00ff00")
    a("s_waitcnt lgkmcnt(0)")
    stamp(2)
    for br in range(2):
        for j in range(2):
            for t in range(2):
                for k in range(4):
                    a(f"v_cndmask_b32 v{FB + ((br*2+j)*2+t)*4 + k}, 0, v{QG + (br*2+j)*4 + k}, s[{60+2*t}:{61+2*t}]")
    nop(2)
    DB = 8
    reg = KB
    for br, ngrp in ((0, 8), (1, 2)):
        for n in range(ngrp):
            d = DB + (br * 8 + n) * 4
            first = True
            for t in range(2):
                for j in range(2):
                    f = FB + ((br * 2 + j) * 2 + t) * 4
                    c = "0" if first else f"v[{d}:{d+3}]"
                    a(f"v_mfma_f32_16x16x32_bf16 v[{d}:{d+3}], v[{f}:{f+3}], v[{reg}:{reg+3}], {c}")
                    first = False; reg += 4
    nop(8)
    SB = 80
    for k in range(4):
        for n in range(10):
            d = DB + n * 4
            if k == 0: a(f"v_mov_b32_dpp v{SB+n}, v{d} quad_perm:[0,0,0,0] {DPP}")
            else: a(f"v_add_f32_dpp v{SB+n}, v{d+k}, v{SB+n} quad_perm:[{k},{k},{k},{k}] {DPP}")
    for n in range(10): a(f"v_cvt_pk_bf16_f32 v{SB+n}, v{SB+n}, v{SB+n}")
    for n in range(10): a(f"v_and_b32 v{SB+n}, 0xffff0000, v{SB+n}")
    A(f"v_max3_f32 v8, v{SB}, v{SB+1}, v{SB+2}", f"v_max_f32 v10, v{SB+8}, v{SB+9}",
      f"v_max3_f32 v8, v8, v{SB+3}, v{SB+4}", f"v_max3_f32 v8, v8, v{SB+5}, v{SB+6}", f"v_max_f32 v8, v8, v{SB+7}")
    allred("max", [8, 10], ["row_ror:4", "row_ror:8"], [12, 13], [32])
    cb = struct.unpack("<I", struct.pack("<f", math.log2(math.e) / 16.0))[0]
    a(f"s_mov_b32 s60, {cb:#x}")
    A("v_mul_f32 v8, s60, v8", "v_mul_f32 v10, s60, v10")
    for n in range(10): a(f"v_fma_f32 v{SB+n}, v{SB+n}, s60, -v{8 if n < 8 else 10}")
    for n in range(10): a(f"v_exp_f32 v{SB+n}, v{SB+n}")
    nop(1)
    for n in range(10): a(f"v_cvt_pk_bf16_f32 v{16+n}, v{SB+n}, v{SB+n}")
    A("v_bfe_u32 v26, v2, 2, 3", "v_lshrrev_b32 v27, 5, v2", "s_lshl_b32 s61, s33, 10", f"s_add_u32 s61, s61, {L_P}",
      "v_lshlrev_b32 v28, 2, v27", "v_lshl_add_u32 v28, v26, 3, v28", "v_lshl_add_u32 v29, v28, 3, s61", "v_lshl_add_u32 v30, v28, 1, s61")
    setexec(0x11111111, 0x11111111)
    A("ds_write_b128 v29, v[16:19]", "ds_write_b128 v29, v[20:23] offset:16", "ds_write_b64 v30, v[24:25] offset:512")
    a("s_mov_b64 exec, -1")
    A(f"v_add_f32 v9, v{SB}, v{SB+1}", f"v_add_f32 v11, v{SB+8}, v{SB+9}")
    for n in range(2, 8): a(f"v_add_f32 v9, v9, v{SB+n}")
    a("s_waitcnt lgkmcnt(0)")
    A("s_lshl_b32 s61, s33, 2", f"s_add_u32 s61, s61, {L_FL+8}", "v_mov_b32 v31, s61", "v_mov_b32 v32, 1", "ds_write_b32 v31, v32")
    allred("add", [9, 11], ["row_ror:4", "row_ror:8"], [12, 13], [32])
    A("v_and_b32 v20, 16, v2", "s_lshl_b32 s61, s33, 3", f"s_add_u32 s61, s61, {L_ML}", "v_lshl_add_u32 v20, v20, 1, s61")
    setexec(0x00010001, 0)
    A("ds_write_b64 v20, v[8:9]", "ds_write_b64 v20, v[10:11] offset:64")
    A("s_mov_b64 exec, 1", f"v_mov_b32 v21, {L_FL+4}", "s_waitcnt lgkmcnt(0)", "ds_add_rtn_u32 v22, v21, v32", "s_waitcnt lgkmcnt(0)",
      "s_mov_b64 exec, -1", "v_readfirstlane_b32 s61, v22")
    stamp(3)
    A("s_cmp_lg_u32 s61, 3", "s_cbranch_scc1 L_kjoin")
    A("v_lshlrev_b32 v20, 3, v4", f"ds_read_b64 v[8:9], v20 offset:{L_ML}", "s_waitcnt lgkmcnt(0)", "v_mov_b32 v10, v8")
    allred("max", [10], [X1Q, X2Q], [], [])
    A("v_sub_f32 v11, v8, v10", "v_exp_f32 v11, v11"); nop(1); a("v_mul_f32 v11, v11, v9")
    allred("add", [11], [X1Q, X2Q], [], [])
    a("v_log_f32 v11, v11"); nop(1)
    A("v_add_f32 v16, v11, v10", "v_mov_b32 v17, s56", "v_and_b32 v16, -16, v16", "v_or_b32 v16, s68, v16")
    A("s_lshl_b32 s57, s31, 10", "s_lshl_b32 s61, s32, 3", "s_add_u32 s61, s61, s57", f"s_add_u32 s61, s61, {X2}")
    A("v_and_b32 v21, 12, v2", "v_lshlrev_b32 v21, 6, v21")
    setexec(0x1111, 0)
    a("buffer_store_dwordx2 v[16:17], v21, s[52:55], s61 offen sc1")
    a("s_mov_b64 exec, -1")
    A("v_sub_f32 v8, v8, v16", "v_exp_f32 v8, v8", "v_lshlrev_b32 v20, 2, v4", f"ds_write_b32 v20, v8 offset:{L_C}")
    lab("L_kjoin")
    A("v_mov_b32 v16, 0", "v_mov_b32 v17, 0", "v_mov_b32 v18, 0", "v_mov_b32 v19, 0", "s_lshl_b32 s61, s33, 11", "v_lshl_add_u32 v20, v2, 4, s61",
      f"ds_write_b128 v20, v[16:19] offset:{L_AO}", f"ds_write_b128 v20, v[16:19] offset:{L_AO+1024}")
    A("s_lshl_b32 s61, s31, 5", "s_add_u32 s61, s61, s32", "s_lshl_b32 s61, s61, 12", "s_lshl_b32 s62, s33, 5", "s_add_u32 s61, s61, s62", f"s_add_u32 s70, s61, {X3}",
      "v_lshrrev_b32 v8, 1, v2", "v_and_b32 v9, 1, v2", "v_lshlrev_b32 v10, 7, v8", "v_lshl_add_u32 v10, v9, 4, v10",
      "v_subrev_u32 v8, s32, v8", "v_and_b32 v8, 31, v8", "v_lshlrev_b32 v8, 3, v8",
      "s_lshl_b32 s61, s31, 10", "s_lshr_b32 s62, s32, 3", "s_lshl_b32 s62, s62, 8", "s_add_u32 s61, s61, s62", f"s_add_u32 s71, s61, {X2}")
    A("v_lshrrev_b32 v11, 5, v2", "v_bfe_u32 v12, v2, 4, 1", "v_lshl_add_u32 v11, v12, 1, v11", "v_lshl_add_u32 v11, v9, 2, v11", "v_lshlrev_b32 v11, 10, v11",
      "v_bfe_u32 v12, v2, 1, 3", "v_mul_u32_u24 v12, 18, v12", "v_add_u32 v11, v11, v12", "s_lshl_b32 s61, s33, 8", f"s_add_u32 s61, s61, {L_AO}", "v_add_u32 v11, s61, v11")
    A("s_lshr_b32 s61, s2, 5", "s_lshl_b32 s61, s61, 3", "s_add_u32 s61, s61, s31", "s_and_b32 s62, s32, 3",
      "s_lshl_b32 s63, s61, 2", "s_add_u32 s63, s63, s62", "s_lshl_b32 s46, s63, 4", "s_lshl_b32 s63, s63, 5",
      "s_mov_b32 s45, s61",
      "s_cmp_ge_u32 s61, 14", f"s_cselect_b32 s62, {128*1792 - 1792}, 0", "s_add_u32 s63, s63, s62", f"s_add_u32 s44, s63, {X4}",
      "v_lshrrev_b32 v13, 1, v2", "v_mul_u32_u24 v13, 1792, v13", "v_lshl_add_u32 v13, v9, 4, v13",
      "v_lshrrev_b32 v14, 5, v2", "v_bfe_u32 v15, v2, 4, 1", "v_lshl_add_u32 v14, v15, 1, v14", "v_lshl_add_u32 v14, v9, 2, v14", "v_lshlrev_b32 v14, 1, v14",
      "s_mov_b32 s48, s24", "s_mov_b32 s49, s25", "s_mov_b32 s50, 1792", "s_mov_b32 s51, 0x20000", f"s_mov_b32 s59, {SPIN}")
    W = 24; G = 16
    A("s_lshl_b32 s61, s33, 2", f"s_add_u32 s61, s61, {L_FL+32}", "v_mov_b32 v20, s61", f"s_mov_b32 s59, {SPIN*20}")
    lab("L_twait")
    A("s_sleep 4", "ds_read_b32 v21, v20", "s_waitcnt lgkmcnt(0)", "v_readfirstlane_b32 s61, v21",
      "s_sub_u32 s59, s59, 1", "s_cbranch_scc1 L_twait_done", "s_cmp_eq_u32 s61, 0", "s_cbranch_scc1 L_twait")
    lab("L_twait_done")
    A(f"s_mov_b32 s59, {SPIN}", f"buffer_load_dwordx4 v[{G}:{G+3}], v10, s[52:55], s70 offen sc1")
    lab("L_wchk")
    A(f"buffer_load_dwordx2 v[{W}:{W+1}], v8, s[52:55], s71 offen sc1", "s_waitcnt vmcnt(0)",
      f"v_cmp_ne_u32 vcc, s56, v{W+1}", "s_sub_u32 s59, s59, 1", "s_cbranch_scc1 L_wok", "s_cbranch_vccnz L_wchk")
    lab("L_wok")
    A(f"v_and_b32 v{W+1}, 15, v{W}", f"v_cmp_ne_u32 vcc, s68, v{W+1}")
    if force is not None: a("s_mov_b64 vcc, -1")
    A("s_cbranch_vccz L_coloc", f"v_mov_b32 v{W+1}, {L_FL+28}", f"v_mov_b32 v{W+2}, 1", f"ds_write_b32 v{W+1}, v{W+2}")
    lab("L_coloc")
    a(f"v_mov_b32 v{W+1}, v{W}")
    allred("max", [W+1], ["row_ror:8", "row_ror:4", "row_ror:2"], [W+2], [16, 32])
    A(f"v_sub_f32 v{W}, v{W}, v{W+1}", f"v_exp_f32 v{W}, v{W}"); nop(1)
    a(f"v_mov_b32 v{W+1}, v{W}")
    allred("add", [W+1], ["row_ror:8", "row_ror:4", "row_ror:2"], [W+2], [16, 32])
    a(f"v_rcp_f32 v{W+1}, v{W+1}"); nop(1)
    A(f"v_mul_f32 v{W}, v{W}, v{W+1}", f"s_mov_b32 s59, {SPIN}")
    stamp(5)
    a("s_waitcnt lgkmcnt(0)")
    a("s_barrier")
    stamp(6)
    if odelay: a(f"s_sleep {odelay}")
    lab("L_opoll")
    a(f"buffer_load_dwordx4 v[{G}:{G+3}], v10, s[52:55], s70 offen sc1")
    a("s_waitcnt vmcnt(0)")
    bytecheck([G], 20)
    A("v_cmp_ne_u32 vcc, 0, v20", "s_and_b64 exec, vcc, vcc", "s_cbranch_scc0 L_opoll_done",
      "s_bcnt1_i32_b64 s61, exec", f"s_cmp_le_u32 s61, {othr}", "s_cbranch_scc1 L_opoll_ns", f"s_sleep {osleep}")
    lab("L_opoll_ns")
    A("s_sub_u32 s59, s59, 1", "s_cbranch_scc0 L_opoll")
    lab("L_opoll_done")
    a("s_mov_b64 exec, -1")
    stamp(7)
    for k in range(4): a(f"v_mul_f32 v{G+k}, v{G+k}, v{W}")
    nop(1)
    redscat(G)
    A(f"v_cvt_pk_bf16_f32 v{G}, v{G}, v{G}", f"ds_write_b16 v11, v{G}", "s_waitcnt lgkmcnt(0)")
    a("s_barrier")
    A("s_cmp_lg_u32 s30, 0", "s_cbranch_scc1 L_fin", "s_cmp_ge_u32 s45, 28", "s_cbranch_scc1 L_fin", f"s_mov_b32 s59, {SPIN}")
    lab("L_fpoll")
    if fsleep: a(f"s_sleep {fsleep}")
    a("s_mov_b32 s47, s44")
    for n in range(4):
        a(f"buffer_load_dwordx4 v[{32+4*n}:{35+4*n}], v13, s[52:55], s47 offen sc1")
        if n < 3: a(f"s_add_u32 s47, s47, {32*1792}")
    a("s_waitcnt vmcnt(0)")
    bytecheck([32, 36, 40, 44], 20)
    A("v_cmp_ne_u32 vcc, 0, v20", "s_sub_u32 s59, s59, 1", "s_cbranch_scc1 L_fpoll_done", "s_cbranch_vccnz L_fpoll")
    lab("L_fpoll_done")
    stamp(8)
    for k in range(4): A(f"v_add_f32 v{32+k}, v{32+k}, v{36+k}", f"v_add_f32 v{40+k}, v{40+k}, v{44+k}")
    for k in range(4): a(f"v_add_f32 v{32+k}, v{32+k}, v{40+k}")
    nop(1)
    redscat(32)
    a("v_cvt_pk_bf16_f32 v32, v32, v32")
    setexec(0x00030003, 0x00030003)
    a("buffer_store_short v32, v14, s[48:51], s46 offen")
    A("s_cmp_lg_u32 s2, 0", "s_cbranch_scc1 L_fin", "s_mov_b64 exec, 1", "v_mov_b32 v25, s56", "v_mov_b32 v26, 0",
      "buffer_store_dword v25, v26, s[52:55], 0 offen sc1")
    a("s_branch L_fin")

    lab("L_vwave")
    a("s_setprio 3")
    A(f"v_mov_b32 v5, {L_FL}", "v_mov_b32 v8, 0", "v_mov_b32 v9, 0", "v_mov_b32 v10, 0", "v_mov_b32 v11, 0",
      "ds_write_b128 v5, v[8:11]", "ds_write_b128 v5, v[8:11] offset:16", "ds_write_b128 v5, v[8:11] offset:32")
    A("v_lshrrev_b32 v6, 3, v2", "v_and_b32 v7, 7, v2", "v_lshlrev_b32 v12, 13, v6", "v_lshl_add_u32 v12, v7, 4, v12", "v_lshlrev_b32 v13, 1, v6")
    ne_tab = sum(v << (8 * i) for i, v in enumerate(nE))
    A("s_lshr_b32 s63, s31, 1", "s_lshl_b32 s60, s63, 5", "s_add_u32 s60, s60, s32", "s_sub_u32 s60, s60, 16",
      "s_mul_i32 s61, s60, 147", "s_lshr_b32 s61, s61, 10", "s_mul_i32 s62, s61, 7", "s_sub_u32 s62, s60, s62",
      "s_cmp_ge_u32 s62, 3", "s_addc_u32 s62, s62, 0", "s_lshl_b32 s61, s61, 3", "s_add_u32 s70, s61, s62",
      "s_lshl_b32 s63, s63, 3", f"s_mov_b32 s61, {ne_tab:#x}", "s_lshr_b32 s61, s61, s63", "s_and_b32 s69, s61, 0xff",
      "s_lshl_b32 s61, s32, 3", "s_add_u32 s61, s61, 3",
      "s_cmp_lt_i32 s60, 0", "s_cselect_b32 s70, s61, s70", f"s_cselect_b32 s69, {nE3}, s69",
      "s_sub_u32 s61, 14, s69", "s_bitcmp1_b32 s31, 0", "s_cselect_b32 s71, s69, 0", "s_cselect_b32 s69, s61, s69",
      "s_lshl_b32 s71, s71, 6", "s_lshl_b32 s61, s33, 4", "s_add_u32 s71, s71, s61")
    A("s_and_b32 s61, s70, 63", "s_lshl_b32 s61, s61, 7", "s_lshl_b32 s62, s71, 12", "s_add_u32 s61, s61, s62",
      "s_mov_b32 s50, 896", "s_mov_b32 s51, 0x20000", "s_mov_b32 s46, 3670016", "s_mov_b32 s47, 0x20000")
    a("s_waitcnt lgkmcnt(0)")
    A("s_load_dword s56, s[28:29], 0",
      "s_cmp_ge_u32 s70, 64", "s_cselect_b32 s44, s20, s10", "s_cselect_b32 s45, s21, s11", "s_cselect_b32 s48, s14, s4", "s_cselect_b32 s49, s15, s5")
    WQ = 96; XR = 24
    for n in range(14):
        A(f"s_cmp_le_u32 s69, {n}", "s_cbranch_scc1 L_wqdone")
        if NW and n >= NW: a(f"s_waitcnt vmcnt({2*NW-2})")
        A(
          f"buffer_load_dwordx4 v[{WQ+4*n}:{WQ+4*n+3}], v12, s[44:47], s61 offen{wld}",
          f"buffer_load_ushort v{XR+n}, v13, s[48:51], s71 offen offset:{n*64}")
        if n < 13: a(f"s_add_u32 s61, s61, {32*8192}")
    lab("L_wqdone")
    a("s_barrier")
    A("s_mov_b32 s36, s8", "s_mov_b32 s37, s9", "s_mov_b32 s40, s18", "s_mov_b32 s41, s19", "s_mov_b32 s52, s28", "s_mov_b32 s53, s29")
    A("v_lshlrev_b32 v14, 9, v3", "v_lshl_add_u32 v14, v4, 4, v14")
    A("s_cmp_ge_u32 s32, 16", "s_cselect_b32 s44, s22, s12", "s_cselect_b32 s45, s23, s13")
    A("s_and_b32 s48, s32, 15", "s_lshl_b32 s48, s48, 5", "s_lshl_b32 s62, s31, 9", "s_add_u32 s48, s48, s62", "s_mul_i32 s48, s48, 896",
      "s_mul_i32 s62, s33, 224", "s_add_u32 s48, s48, s62", "s_add_u32 s49, s48, 3584")
    A("v_mul_u32_u24 v15, 7168, v3", "v_lshl_add_u32 v15, v4, 4, v15", "v_cmp_lt_u32 vcc, 13, v4", "v_mov_b32 v8, 0x40000000"); nop(1)
    a("v_cndmask_b32 v15, v15, v8, vcc")
    a("s_waitcnt lgkmcnt(0)")
    maketag()
    AC = 16
    for k in range(8): a(f"v_mov_b32 v{AC+k}, 0")
    a("s_waitcnt vmcnt(0)")
    stamp(1)
    for n in range(14):
        A(f"s_cmp_le_u32 s69, {n}", "s_cbranch_scc1 L_fmadone", f"v_lshlrev_b32 v{XR+n}, 16, v{XR+n}")
        for k in range(4):
            w = WQ + 4 * n + k
            A(f"v_lshlrev_b32 v8, 16, v{w}", f"v_and_b32 v9, 0xffff0000, v{w}", f"v_fmac_f32 v{AC+2*k}, v8, v{XR+n}", f"v_fmac_f32 v{AC+2*k+1}, v9, v{XR+n}")
    lab("L_fmadone")
    allred("add", [AC + k for k in range(8)], ["row_ror:8"], [], [])
    A("s_lshl_b32 s61, s33, 10", f"s_add_u32 s61, s61, {L_QP}", "v_lshlrev_b32 v8, 8, v3", "v_lshl_add_u32 v8, v7, 5, v8", "v_add_u32 v8, s61, v8")
    setexec(0x00ff00ff, 0x00ff00ff)
    A(f"ds_write_b128 v8, v[{AC}:{AC+3}]", f"ds_write_b128 v8, v[{AC+4}:{AC+7}] offset:16")
    A("s_mov_b64 exec, 1", "v_mov_b32 v9, 1", "s_waitcnt lgkmcnt(0)", "ds_add_rtn_u32 v10, v5, v9", "s_waitcnt lgkmcnt(0)",
      "s_mov_b64 exec, -1", "v_readfirstlane_b32 s61, v10", "s_cmp_lg_u32 s61, 3", "s_cbranch_scc1 L_vload")
    A("v_lshlrev_b32 v8, 10, v3", "v_lshl_add_u32 v8, v4, 4, v8")
    for k in range(4): a(f"ds_read_b128 v[{16+4*k}:{19+4*k}], v8 offset:{L_QP + k*256}")
    a("s_waitcnt lgkmcnt(0)")
    for k in range(4): A(f"v_add_f32 v{16+k}, v{16+k}, v{20+k}", f"v_add_f32 v{24+k}, v{24+k}, v{28+k}")
    for k in range(4): a(f"v_add_f32 v{16+k}, v{16+k}, v{24+k}")
    allred("add", [16, 17, 18, 19], [], [20, 21, 22, 23], [16, 32])
    A("s_bfe_u32 s61, s70, 0x30003", "s_lshl_b32 s61, s61, 13", "s_lshr_b32 s62, s70, 6", "s_lshl_b32 s62, s62, 12", "s_add_u32 s61, s61, s62",
      "s_and_b32 s62, s70, 7", "s_lshl_b32 s62, s62, 8", "s_add_u32 s61, s61, s62", "s_and_b32 s62, s31, 1", "s_lshl_b32 s62, s62, 11", "s_add_u32 s61, s61, s62",
      f"s_add_u32 s61, s61, {X1}", "v_lshlrev_b32 v8, 4, v4", "v_mov_b32 v9, 0xffffff00")
    pack(16, 16, 9)
    setexec(0xffff, 0)
    A("buffer_store_dwordx4 v[16:19], v8, s[52:55], s61 offen sc1", "s_mov_b64 exec, -1")
    stamp(8)
    lab("L_vload")
    a(f"s_setprio {kvprio[1]}")
    VB = 96; WB = 16
    def woload(t):
        a(f"buffer_load_dwordx4 v[{WB+4*t}:{WB+4*t+3}], v15, s[44:47], s{48 if t < 4 else 49} offen offset:{(t&3)*896}{wld}")
    nop(2)
    vl = []
    reg = VB
    for br, npc, srd, so in ((0, 16, 36, 34), (1, 4, 40, 35)):
        for i in range(npc):
            for hf in range(2):
                pre = [f"s_xor_b32 s57, s{so}, {i << 13}"] if hf == 0 else []
                vl.append(pre + [f"buffer_load_dwordx4 v[{reg}:{reg+3}], v14, s[{srd}:{srd+3}], s57 offen offset:{hf*256}{ld}"]); reg += 4
    wo = [[f"buffer_load_dwordx4 v[{WB+4*t}:{WB+4*t+3}], v15, s[44:47], s{48 if t < 4 else 49} offen offset:{(t&3)*896}{wld}"] for t in range(8)]
    issue = vl[:2*wo_at] + wo + vl[2*wo_at:]
    vpos = [k if k < 2*wo_at else k + 8 for k in range(40)]
    PB_ = 48; OD = 76; AB = 68
    def setup():
        A("v_and_b32 v12, 1, v2", "v_lshlrev_b32 v12, 4, v12", "v_mov_b32 v13, 0xffff", "v_lshlrev_b32 v12, v12, v13", "v_bfe_u32 v13, v2, 1, 2")
        for j in range(4):
            a(f"v_cmp_eq_u32 vcc, {j}, v13"); nop(2); a(f"v_cndmask_b32 v{8+j}, 0, v12, vcc")
        A("s_lshl_b32 s61, s33, 12", "v_lshl_add_u32 v92, v2, 4, s61", "s_lshl_b32 s61, s33, 10", "v_lshl_add_u32 v93, v2, 4, s61",
          "s_lshr_b32 s61, s33, 1", "s_lshl_b32 s62, s61, 5", f"s_add_u32 s62, s62, {L_C}", "v_lshrrev_b32 v12, 5, v2", "v_lshl_add_u32 v94, v12, 4, s62",
          "s_lshl_b32 s61, s61, 4", "s_and_b32 s62, s33, 1", "s_lshl_b32 s62, s62, 2", "s_add_u32 s61, s61, s62",
          "v_lshrrev_b32 v13, 2, v4", "v_lshl_add_u32 v13, v12, 3, v13", "v_add_u32 v13, s61, v13",
          "v_add_u32 v1, s32, v13", "v_and_b32 v1, 31, v1", "v_lshlrev_b32 v1, 7, v1", "v_lshl_add_u32 v95, v13, 12, v1",
          "v_and_b32 v13, 3, v2", "v_lshl_add_u32 v95, v13, 5, v95", "v_and_b32 v13, 1, v3", "v_lshl_add_u32 v95, v13, 4, v95",
          "s_lshl_b32 s61, s31, 17", f"s_add_u32 s70, s61, {X3}", "v_mov_b32 v5, 0xffffff00",
          "s_lshr_b32 s61, s32, 4", "s_lshl_b32 s61, s61, 7", "s_lshl_b32 s62, s31, 4", "s_add_u32 s61, s61, s62", "s_and_b32 s62, s32, 15", "s_add_u32 s61, s61, s62",
          "s_mul_i32 s61, s61, 1792", "s_mul_i32 s62, s33, 448", "s_add_u32 s61, s61, s62", f"s_add_u32 s71, s61, {X4}",
          "v_lshlrev_b32 v6, 5, v4", "v_lshl_add_u32 v6, v13, 4, v6", "v_lshlrev_b32 v7, 4, v2")
    def pwait():
        A("s_lshl_b32 s61, s33, 2", f"s_add_u32 s61, s61, {L_FL+8}", "v_mov_b32 v12, s61", f"s_mov_b32 s59, {SPIN*100}")
        lab("L_pwait")
        A("ds_read_b32 v13, v12", "s_waitcnt lgkmcnt(0)", "v_readfirstlane_b32 s69, v13",
          "s_sub_u32 s59, s59, 1", "s_cbranch_scc1 L_pwait_done", "s_cmp_eq_u32 s69, 0", "s_cbranch_scc1 L_pwait")
        lab("L_pwait_done")
        A("v_bfe_u32 v12, v2, 3, 1", "v_lshl_add_u32 v12, v12, 2, v3", "s_lshl_b32 s61, s33, 10", f"s_add_u32 s61, s61, {L_P}",
          "v_lshl_add_u32 v13, v12, 6, s61", "v_lshl_add_u32 v12, v12, 4, s61")
        for k in range(4): a(f"ds_read_b128 v[{PB_+4*k}:{PB_+4*k+3}], v13 offset:{16*k}")
        a(f"ds_read_b128 v[{PB_+16}:{PB_+19}], v12 offset:512")
        a("s_waitcnt lgkmcnt(0)")
        stamp(4)
    def pv(step, issued):
        br, b = (0, step) if step < 16 else (1, step - 16)
        n = b >> 1; t = b & 1
        p = PB_ + (t * 8 + n if br == 0 else 16 + t * 2 + n)
        ab = AB + (step & 1) * 4
        for j in range(4): a(f"v_and_b32 v{ab+j}, v{p}, v{8+j}")
        a(f"s_waitcnt vmcnt({issued - 1 - vpos[2*step+1]})")
        a("s_nop 0")
        for hf in range(2):
            d = OD + (br * 2 + hf) * 4; r = VB + (2 * step + hf) * 4
            c = "0" if b == 0 else f"v[{d}:{d+3}]"
            a(f"v_mfma_f32_16x16x32_bf16 v[{d}:{d+3}], v[{ab}:{ab+3}], v[{r}:{r+3}], {c}")
        if step == 17:
            for k in range(2): a(f"ds_write_b128 v92, v[{OD+4*k}:{OD+4*k+3}] offset:{L_OP + k*1024}")
    setup()
    a("s_barrier")
    stamp(2)
    ns = 0; havep = False
    for ni0, ins in enumerate(issue):
        if NV and ni0 >= NV: a(f"s_waitcnt vmcnt({NV-1})")
        A(*ins); ni = ni0 + 1
        if ni == trig: A("s_lshl_b32 s61, s33, 2", f"s_add_u32 s61, s61, {L_FL+32}", "v_mov_b32 v12, s61", "ds_write_b32 v12, v12")
        if ni == 48: stamp(3)
        if ni == 2 * p0: pwait(); havep = True
        if havep and ns < 20 and vpos[2*ns+1] < ni - (NV if NV else 12):
            pv(ns, ni); ns += 1
    while ns < 20:
        pv(ns, 48); ns += 1
    nop(7)
    for k in range(2, 4): a(f"ds_write_b128 v92, v[{OD+4*k}:{OD+4*k+3}] offset:{L_OP + k*1024}")
    stamp(5)
    a("s_waitcnt lgkmcnt(0)")
    a("s_barrier")
    T = 96
    A(f"ds_read_b32 v13, v7 offset:{L_FL+28}", f"ds_read_b128 v[{T+16}:{T+19}], v94")
    for k in range(4): a(f"ds_read_b128 v[{T+4*k}:{T+4*k+3}], v93 offset:{L_OP + k*4096}")
    for k in range(4):
        a(f"s_waitcnt lgkmcnt({3-k})")
        if k == 0: a("v_readfirstlane_b32 s61, v13")
        if k == 1: a("s_cmp_eq_u32 s61, 0")
        for m in range(4):
            if k == 0: a(f"v_mul_f32 v{T+20+m}, v{T+m}, v{T+16}")
            else: a(f"v_fmac_f32 v{T+20+m}, v{T+4*k+m}, v{T+16+k}")
    pack(T + 20, T + 20, 5)
    a("s_cbranch_scc1 L_x3fast")
    a(f"buffer_store_dwordx4 v[{T+20}:{T+23}], v95, s[52:55], s70 offen sc1")
    a("s_branch L_x3done")
    lab("L_x3fast")
    a(f"buffer_store_dwordx4 v[{T+20}:{T+23}], v95, s[52:55], s70 offen")
    lab("L_x3done")
    stamp(6)
    a("s_waitcnt vmcnt(1)")
    stamp(7)
    a("s_barrier")
    AO = T + 32
    for t in range(8): a(f"ds_read_b128 v[{AO+4*t}:{AO+4*t+3}], v7 offset:{L_AO + t*1024}")
    for t in range(8):
        a(f"s_waitcnt lgkmcnt({7-t})")
        c = "0" if t == 0 else f"v[{T}:{T+3}]"
        a(f"v_mfma_f32_16x16x32_bf16 v[{T}:{T+3}], v[{AO+4*t}:{AO+4*t+3}], v[{WB+4*t}:{WB+4*t+3}], {c}")
    setexec(0x3fff3fff, 0)
    nop(6)
    pack(T + 4, T, 5)
    a(f"buffer_store_dwordx4 v[{T+4}:{T+7}], v6, s[52:55], s71 offen sc1")
    lab("L_fin")
    if stamps:
        a("s_mov_b64 exec, -1")
        stamp(9)
        a("s_waitcnt lgkmcnt(0)")
        A("s_lshl_b32 s61, s2, 3", "s_add_u32 s61, s61, s30", "s_lshl_b32 s61, s61, 6", f"s_add_u32 s61, s61, {STAMP}")
        for k in range(10): a(f"v_mov_b32 v{32+k}, s{72+2*k}")
        A("s_getreg_b32 s62, hwreg(HW_REG_XCC_ID)", "v_mov_b32 v42, s62", "v_mov_b32 v43, s59", "v_mov_b32 v1, 0", "s_mov_b64 exec, 1")
        for k in range(3): a(f"buffer_store_dwordx4 v[{32+4*k}:{35+4*k}], v1, s[52:55], s61 offen offset:{16*k}")
    lab("L_end"); a("s_endpgm")
    L.append('.section .rodata,"a"'); L.append(".p2align 6"); L.append(f".amdhsa_kernel {KN}")
    for s in ("next_free_vgpr 256", "next_free_sgpr 96", "accum_offset 256", "group_segment_fixed_size 0", "kernarg_size 104", "user_sgpr_count 2", "user_sgpr_kernarg_segment_ptr 1", "system_sgpr_workgroup_id_x 1"):
        L.append("  .amdhsa_" + s)
    L.append(".end_amdhsa_kernel")
    open(name, "w").write("\n".join(L) + "\n")

if __name__ == "__main__":
    import subprocess
    names = []
    def g(n, **k): gen(n, **k); names.append(n)
    g("k9.s"); g("k9_st.s", stamps=True); g("k9_slow.s", force=1); g("k9_n6.s", NK=6, NV=6); g("k9_n12.s", NK=12, NV=12); g("k9_n0.s", NK=0, NV=0)
    g("k9_w18.s", wo_at=18); g("k9_w16.s", wo_at=16); g("k9_e7.s", nE=(7,7,7,7), nE3=7); g("k9_e9.s", nE=(9,9,9,9)); g("k9_p8.s", p0=8)
    print(" ".join(names))
```

```python
import sys, math, struct
KN = "concat_heads__gqa_block_cached__sliding_block_cached__decode_kernel"
HDR = open("concat_heads__gqa_block_cached__sliding_block_cached__decode.s.ref").read().split("; Override")[0]

X2 = 0x4000
X1 = 0x10000
X3 = 0x40000
X4 = 0x200000
XG = 0x300000
STAMP = 0x8000000
L_OP = 0; L_QP = 0; L_P = 0x4000; L_Q = 0x5000; L_C = 0x5800; L_FL = 0x5840; L_ML = 0x5900; L_AO = 0x6000
LDS_BYTES = 0x8000
SPIN = 20000
DPP = "row_mask:0xf bank_mask:0xf"
TB = 10; TM = (1 << TB) - 1

DOC = """; ---------------------------------------------------------------------------------------------
; ---------------------------------------------------------------------------------------------"""

def gen(name, stamps=False, NK=7, NV=7, nE=(9, 9, 9, 9), nE3=7, p0=12, wo_at=16, wo_pre=1, trig=30, qsleep=4, osleep=4, othr=8,
        odelay=11, gdelay=7, remap=False, force=False, side=0):
    L = []
    def a(s): L.append("  " + s)
    def A(*ss):
        for s in ss: a(s)
    def c(s): L.append("  ; " + s)
    def lab(s): L.append(s + ":")
    def nop(n): a(f"s_nop {n-1}")
    def stamp(k):
        if stamps and k in (0, 3, 9): a(f"s_memrealtime s[{72+2*k}:{73+2*k}]")
    def setexec(lo, hi): A(f"s_mov_b32 exec_lo, {lo:#x}", f"s_mov_b32 exec_hi, {hi:#x}")
    def allred(op, regs, dpps, tmp, swaps):
        for r in dpps:
            nop(2)
            for x in regs: a(f"v_{op}_f32_dpp v{x}, v{x}, v{x} {r} {DPP}")
        for sw in swaps:
            for x, t in zip(regs, tmp): a(f"v_mov_b32 v{t}, v{x}")
            nop(2)
            for x, t in zip(regs, tmp): a(f"v_permlane{sw}_swap_b32 v{x}, v{t}")
            nop(1)
            for x, t in zip(regs, tmp): a(f"v_{op}_f32 v{x}, v{x}, v{t}")
    def maketag():
        c("s56 = launch tag (LCG step of the epoch word), s64..s67 = 10-bit per-dword tags")
        A("s_mul_i32 s56, s56, 0x9E3779B1", "s_add_u32 s56, s56, 0x7F4A7C15", "s_mul_i32 s67, s56, 0x85EBCA6B",
          f"s_and_b32 s64, s56, {TM:#x}", f"s_bfe_u32 s65, s56, {(TB << 16) | 11:#x}", f"s_lshr_b32 s66, s56, {32-TB}", f"s_lshr_b32 s67, s67, {32-TB}")
    def tagcheck(bases, t, m=TM):
        first = True
        for b in bases:
            for k in range(4):
                if first: a(f"v_xor_b32 v{t}, s{64+k}, v{b+k}"); first = False
                else: a(f"v_bitop3_b32 v{t}, v{b+k}, s{64+k}, v{t} bitop3:0xbe")
        a(f"v_and_b32 v{t}, {m:#x}, v{t}")
    def pack(dst, src, m):
        for k in range(4): a(f"v_bfi_b32 v{dst+k}, v{m}, s{64+k}, v{src+k}")
    def redscat(g):
        A(f"v_permlane32_swap_b32 v{g}, v{g+1}", f"v_permlane32_swap_b32 v{g+2}, v{g+3}", f"v_add_f32 v{g}, v{g}, v{g+1}", f"v_add_f32 v{g+2}, v{g+2}, v{g+3}"); nop(2)
        a(f"v_permlane16_swap_b32 v{g}, v{g+2}"); nop(1)
        a(f"v_add_f32 v{g}, v{g}, v{g+2}")
        allred("add", [g], ["row_ror:8", "row_ror:4", "row_ror:2"], [], [])
    X1Q, X2Q = "quad_perm:[1,0,3,2]", "quad_perm:[2,3,0,1]"

    L.append(HDR.rstrip())
    L.append(f"; @launch grid=(256,1,1) block=(512,1,1) lds={LDS_BYTES}")
    L.append(DOC)
    L.append('.amdgcn_target "amdgcn-amd-amdhsa--gfx950"')
    L.append(".text"); L.append(f".globl {KN}"); L.append(".p2align 8"); L.append(f".type {KN},@function"); lab(KN)
    A("s_cmp_ge_u32 s2, 256", "s_cbranch_scc1 L_end")
    A("s_load_dwordx16 s[4:19], s[0:1], 0", "s_load_dwordx8 s[20:27], s[0:1], 64", "s_load_dwordx2 s[28:29], s[0:1], 96")
    if remap: A("s_and_b32 s3, s2, 31", "s_lshl_b32 s3, s3, 3", "s_lshr_b32 s2, s2, 5", "s_or_b32 s2, s2, s3")
    stamp(0)
    c("v2 = lane, v3 = lane>>4, v4 = lane&15; s30 = wave, s31 = h, s32 = s, s33 = wave&3")
    A("v_lshrrev_b32 v1, 6, v0", "v_and_b32 v2, 63, v0", "s_and_b32 s31, s2, 7", "v_readfirstlane_b32 s30, v1", "s_lshr_b32 s32, s2, 3",
      "v_lshrrev_b32 v3, 4, v2", "v_and_b32 v4, 15, v2", "s_and_b32 s33, s30, 3")
    c("s34/s35 = K/V byte offsets of branch A/B; 2 KB pieces interleaved over the 4 waves, order xor-scrambled per WG")
    A("s_lshl_b32 s57, s31, 22", "s_lshl_b32 s58, s33, 11", "s_add_u32 s57, s57, s58", "s_mul_i32 s58, s2, 0x9e3779b1", "s_lshr_b32 s58, s58, 7",
      "s_lshl_b32 s35, s32, 15", "s_add_u32 s35, s35, s57", "s_and_b32 s59, s58, 0x6000", "s_add_u32 s35, s35, s59", "s_add_u32 s35, s35, 0x300000",
      "s_lshl_b32 s34, s32, 17", "s_add_u32 s34, s34, s57", "s_and_b32 s59, s58, 0x1e000", "s_add_u32 s34, s34, s59")
    A("s_mov_b32 s38, 0x2000000", "s_mov_b32 s39, 0x20000", "s_mov_b32 s42, 0x2000000", "s_mov_b32 s43, 0x20000",
      "s_mov_b32 s54, 0x10000000", "s_mov_b32 s55, 0x20000")
    A("s_cmp_ge_u32 s30, 4", "s_cbranch_scc1 L_vwave")

    c("================================ K-waves ================================")
    KB = 96
    a("s_setprio 1")
    c("K lane layout: lane (g, key4, sub) reads key4*512 + g*64 + sub*16 (+256 for the second half row)")
    A("v_bfe_u32 v5, v2, 2, 2", "v_and_b32 v6, 3, v2", "v_lshlrev_b32 v7, 6, v3", "v_lshl_add_u32 v7, v6, 4, v7", "v_lshl_add_u32 v7, v5, 9, v7")
    a("s_waitcnt lgkmcnt(0)")
    A("s_mov_b32 s36, s6", "s_mov_b32 s37, s7", "s_mov_b32 s40, s16", "s_mov_b32 s41, s17")
    reg = KB; cnt = 0
    for br, npc, srd, so in ((0, 16, 36, 34), (1, 4, 40, 35)):
        for i in range(npc):
            a(f"s_xor_b32 s57, s{so}, {i << 13}")
            for j in range(2):
                if cnt >= NK: a(f"s_waitcnt vmcnt({NK-1})")
                a(f"buffer_load_dwordx4 v[{reg}:{reg+3}], v7, s[{srd}:{srd+3}], s57 offen offset:{j*256} nt"); reg += 4; cnt += 1
            if cnt == 4:
                c("epoch word; bring this WG's X3 lines into L2 (value unused)")
                A("s_load_dword s56, s[28:29], 0", "s_mov_b32 s52, s28", "s_mov_b32 s53, s29",
                  "s_lshl_b32 s61, s31, 5", "s_add_u32 s61, s61, s32", "s_lshl_b32 s61, s61, 12", "s_lshl_b32 s62, s33, 10", "s_add_u32 s61, s61, s62", f"s_add_u32 s61, s61, {X3}",
                  "v_lshlrev_b32 v8, 4, v2", "buffer_load_dwordx4 v[12:15], v8, s[52:55], s61 offen sc1", "s_barrier")
    a("s_barrier")
    c("gather q (wave = branch*2+head): add the two partials, round to bf16, share through LDS")
    A("v_bfe_u32 v8, v2, 2, 1", "v_lshlrev_b32 v8, 9, v8", "v_lshl_add_u32 v8, v3, 6, v8", "v_lshl_add_u32 v8, v6, 4, v8", f"v_mov_b32 v9, {L_FL+24}")
    A("v_lshlrev_b32 v12, 4, v2", "s_lshl_b32 s58, s31, 13", "s_lshr_b32 s61, s33, 1", "s_lshl_b32 s61, s61, 12", "s_add_u32 s58, s58, s61",
      "s_and_b32 s61, s33, 1", "s_lshl_b32 s61, s61, 10", "s_add_u32 s58, s58, s61", f"s_add_u32 s58, s58, {X1}",
      "s_lshl_b32 s61, s33, 9", f"s_add_u32 s61, s61, {L_Q}", "v_lshl_add_u32 v13, v2, 3, s61", "v_mov_b32 v14, 1",
      "s_getreg_b32 s68, hwreg(HW_REG_XCC_ID, 0, 4)")
    a("s_waitcnt lgkmcnt(0)")
    maketag()
    A(f"s_mov_b32 s59, {SPIN}", "s_branch L_qpoll1")
    lab("L_qpoll")
    a(f"s_sleep {qsleep}")
    lab("L_qpoll1")
    A("buffer_load_dwordx4 v[16:19], v12, s[52:55], s58 offen sc1", "buffer_load_dwordx4 v[20:23], v12, s[52:55], s58 offen offset:2048 sc1", "s_waitcnt vmcnt(0)")
    tagcheck([16, 20], 10, 0xff)
    A("v_cmp_ne_u32 vcc, 0, v10", "s_sub_u32 s59, s59, 1", "s_cbranch_scc1 L_qpoll_done", "s_cbranch_vccnz L_qpoll")
    lab("L_qpoll_done")
    for k in range(8): a(f"v_and_b32 v{16+k}, 0xffffff00, v{16+k}")
    for k in range(4): a(f"v_add_f32 v{16+k}, v{16+k}, v{20+k}")
    A("v_cvt_pk_bf16_f32 v16, v16, v17", "v_cvt_pk_bf16_f32 v17, v18, v19", "ds_write_b64 v13, v[16:17]")
    A("s_mov_b64 exec, 1", "s_waitcnt lgkmcnt(0)", "ds_add_u32 v9, v14", "s_mov_b64 exec, -1", f"s_mov_b32 s59, {SPIN*100}")
    lab("L_qwait")
    A("ds_read_b32 v10, v9", "s_waitcnt lgkmcnt(0)", "v_readfirstlane_b32 s61, v10",
      "s_sub_u32 s59, s59, 1", "s_cbranch_scc1 L_qwait_done", "s_cmp_lt_u32 s61, 4", "s_cbranch_scc1 L_qwait")
    lab("L_qwait_done")
    QG = 16; FB = 48; DB = 8; SB = 80
    c("A operands: row (t, head, sub') = 8 q values; rows of the other key block t are zero")
    for br in range(2):
        for j in range(2):
            r = QG + (br * 2 + j) * 4
            a(f"ds_read_b128 v[{r}:{r+3}], v8 offset:{L_Q + br*1024 + j*256}")
    A("s_mov_b32 s60, 0x00ff00ff", "s_mov_b32 s61, 0x00ff00ff", "s_mov_b32 s62, 0xff00ff00", "s_mov_b32 s63, 0xff00ff00")
    a("s_waitcnt lgkmcnt(0)")
    for br in range(2):
        for j in range(2):
            for t in range(2):
                for k in range(4):
                    a(f"v_cndmask_b32 v{FB + ((br*2+j)*2+t)*4 + k}, 0, v{QG + (br*2+j)*4 + k}, s[{60+2*t}:{61+2*t}]")
    nop(2)
    c("QK^T: 8 keys per accumulator; the score is the sum of the diagonal sub == sub' inside each quad")
    reg = KB
    for br, ngrp in ((0, 8), (1, 2)):
        for n in range(ngrp):
            d = DB + (br * 8 + n) * 4
            first = True
            for t in range(2):
                for j in range(2):
                    f = FB + ((br * 2 + j) * 2 + t) * 4
                    cc = "0" if first else f"v[{d}:{d+3}]"
                    a(f"v_mfma_f32_16x16x32_bf16 v[{d}:{d+3}], v[{f}:{f+3}], v[{reg}:{reg+3}], {cc}")
                    first = False; reg += 4
    nop(8)
    for k in range(4):
        for n in range(10):
            d = DB + n * 4
            if k == 0: a(f"v_mov_b32_dpp v{SB+n}, v{d} quad_perm:[0,0,0,0] {DPP}")
            else: a(f"v_add_f32_dpp v{SB+n}, v{d+k}, v{SB+n} quad_perm:[{k},{k},{k},{k}] {DPP}")
    c("scores are bf16 in the reference; wave-local max (v8: A, v10: B), p = exp2((s - max) * log2e/16)")
    for n in range(10): a(f"v_cvt_pk_bf16_f32 v{SB+n}, v{SB+n}, v{SB+n}")
    for n in range(10): a(f"v_and_b32 v{SB+n}, 0xffff0000, v{SB+n}")
    A(f"v_max3_f32 v8, v{SB}, v{SB+1}, v{SB+2}", f"v_max_f32 v10, v{SB+8}, v{SB+9}",
      f"v_max3_f32 v8, v8, v{SB+3}, v{SB+4}", f"v_max3_f32 v8, v8, v{SB+5}, v{SB+6}", f"v_max_f32 v8, v8, v{SB+7}")
    allred("max", [8, 10], ["row_ror:4", "row_ror:8"], [12, 13], [32])
    cb = struct.unpack("<I", struct.pack("<f", math.log2(math.e) / 16.0))[0]
    a(f"s_mov_b32 s69, {cb:#x}")
    for n in range(10): a(f"v_sub_f32 v{SB+n}, v{SB+n}, v{8 if n < 8 else 10}")
    for n in range(10): a(f"v_mul_f32 v{SB+n}, s69, v{SB+n}")
    for n in range(10): a(f"v_exp_f32 v{SB+n}, v{SB+n}")
    nop(1)
    for n in range(10): a(f"v_cvt_pk_bf16_f32 v{16+n}, v{SB+n}, v{SB+n}")
    A("v_bfe_u32 v26, v2, 2, 3", "v_lshrrev_b32 v27, 5, v2", "s_lshl_b32 s61, s33, 10", f"s_add_u32 s61, s61, {L_P}",
      "v_lshlrev_b32 v28, 2, v27", "v_lshl_add_u32 v28, v26, 3, v28", "v_lshl_add_u32 v29, v28, 3, s61", "v_lshl_add_u32 v30, v28, 1, s61")
    setexec(0x11111111, 0x11111111)
    A("ds_write_b128 v29, v[16:19]", "ds_write_b128 v29, v[20:23] offset:16", "ds_write_b64 v30, v[24:25] offset:512")
    a("s_mov_b64 exec, -1")
    A(f"v_add_f32 v9, v{SB}, v{SB+1}", f"v_add_f32 v11, v{SB+8}, v{SB+9}")
    for n in range(2, 8): a(f"v_add_f32 v9, v9, v{SB+n}")
    a("s_waitcnt lgkmcnt(0)")
    A("s_lshl_b32 s61, s33, 2", f"s_add_u32 s61, s61, {L_FL+8}", "v_mov_b32 v31, s61", "v_mov_b32 v32, 1", "ds_write_b32 v31, v32")
    allred("add", [9, 11], ["row_ror:4", "row_ror:8"], [12, 13], [32])
    A("v_and_b32 v20, 16, v2", "s_lshl_b32 s61, s33, 3", f"s_add_u32 s61, s61, {L_ML}", "v_lshl_add_u32 v20, v20, 1, s61")
    setexec(0x00010001, 0)
    A("ds_write_b64 v20, v[8:9]", "ds_write_b64 v20, v[10:11] offset:64")
    A("s_mov_b64 exec, 1", f"v_mov_b32 v21, {L_FL+4}", "s_waitcnt lgkmcnt(0)", "ds_add_rtn_u32 v22, v21, v32", "s_waitcnt lgkmcnt(0)",
      "s_mov_b64 exec, -1", "v_readfirstlane_b32 s61, v22")
    A("s_cmp_lg_u32 s61, 3", "s_cbranch_scc1 L_kjoin")
    c("last K-wave: WG max / sum, per-wave rescale factors -> LDS, publish X2")
    A("v_lshlrev_b32 v20, 3, v4", f"ds_read_b64 v[8:9], v20 offset:{L_ML}", "s_waitcnt lgkmcnt(0)", "v_mov_b32 v10, v8")
    allred("max", [10], [X1Q, X2Q], [], [])
    A("v_sub_f32 v8, v8, v10", "v_mul_f32 v8, s69, v8", "v_exp_f32 v8, v8", "v_lshlrev_b32 v20, 2, v4", "v_mul_f32 v11, v8, v9", f"ds_write_b32 v20, v8 offset:{L_C}")
    allred("add", [11], [X1Q, X2Q], [], [])
    A("v_mov_b32 v16, v10", "v_mov_b32 v17, s56", "v_and_b32 v18, -16, v11", "v_or_b32 v18, s68, v18", "v_mov_b32 v19, s56")
    A("s_lshl_b32 s57, s31, 11", "s_lshl_b32 s61, s32, 4", "s_add_u32 s61, s61, s57", f"s_add_u32 s61, s61, {X2}")
    A("v_and_b32 v21, 12, v2", "v_lshlrev_b32 v21, 7, v21")
    setexec(0x1111, 0)
    a("buffer_store_dwordx4 v[16:19], v21, s[52:55], s61 offen sc1")
    a("s_mov_b64 exec, -1")
    nop(1)
    lab("L_kjoin")
    c("zero this wave's quarter of the out-projection A image; addresses for the tail")
    A("v_mov_b32 v16, 0", "v_mov_b32 v17, 0", "v_mov_b32 v18, 0", "v_mov_b32 v19, 0", "s_lshl_b32 s61, s33, 11", "v_lshl_add_u32 v20, v2, 4, s61",
      f"ds_write_b128 v20, v[16:19] offset:{L_AO}", f"ds_write_b128 v20, v[16:19] offset:{L_AO+1024}")
    A("s_lshl_b32 s61, s31, 5", "s_add_u32 s61, s61, s32", "s_lshl_b32 s61, s61, 12", "s_lshl_b32 s62, s33, 5", "s_add_u32 s61, s61, s62", f"s_add_u32 s70, s61, {X3}",
      "v_lshrrev_b32 v8, 1, v2", "v_and_b32 v9, 1, v2", "v_lshlrev_b32 v10, 7, v8", "v_lshl_add_u32 v10, v9, 4, v10",
      "v_subrev_u32 v8, s32, v8", "v_and_b32 v8, 31, v8", "v_lshlrev_b32 v8, 4, v8",
      "s_lshl_b32 s61, s31, 11", "s_lshr_b32 s62, s32, 3", "s_lshl_b32 s62, s62, 9", "s_add_u32 s61, s61, s62", f"s_add_u32 s71, s61, {X2}")
    A("v_lshrrev_b32 v11, 5, v2", "v_bfe_u32 v12, v2, 4, 1", "v_lshl_add_u32 v11, v12, 1, v11", "v_lshl_add_u32 v11, v9, 2, v11", "v_lshlrev_b32 v14, 1, v11", "v_lshlrev_b32 v11, 10, v11",
      "v_bfe_u32 v12, v2, 1, 3", "v_lshl_add_u32 v14, v12, 21, v14", "v_mul_u32_u24 v12, 18, v12", "v_add_u32 v11, v11, v12", "s_lshl_b32 s61, s33, 8", f"s_add_u32 s61, s61, {L_AO}", "v_add_u32 v11, s61, v11")
    c("final reducers: wave 0 of WGs with h >= 4, s < 28; 8 output columns each (s45 >= 28: not a reducer)")
    PS = 8 * 16384
    A("s_and_b32 s61, s32, 28", "s_add_u32 s61, s61, s31", "s_sub_u32 s61, s61, 4", "s_cmp_lt_u32 s31, 4", "s_cselect_b32 s61, 99, s61",
      "s_and_b32 s62, s32, 3", "s_lshl_b32 s63, s61, 2", "s_add_u32 s63, s63, s62", "s_lshl_b32 s46, s63, 4", "s_lshl_b32 s63, s63, 5",
      "s_cmp_lg_u32 s30, 0", "s_cselect_b32 s45, 99, s61",
      "s_cmp_ge_u32 s61, 14", f"s_cselect_b32 s62, {32*16384 - 1792}, 0", "s_add_u32 s63, s63, s62", f"s_add_u32 s44, s63, {X4 + side*8192}", f"s_add_u32 s40, s44, {PS}", f"s_add_u32 s41, s44, {2*PS}", f"s_add_u32 s42, s44, {3*PS}",
      "v_bfe_u32 v13, v2, 1, 2", "v_mul_u32_u24 v13, 1920, v13", "v_lshrrev_b32 v15, 3, v2", "v_lshl_add_u32 v13, v15, 14, v13", "v_lshl_add_u32 v13, v9, 4, v13",
      "s_mov_b32 s48, s24", "s_mov_b32 s49, s25", "s_mov_b32 s50, 1792", "s_mov_b32 s51, 0x20000",
      "s_lshl_b32 s58, s32, 2", "s_add_u32 s58, s58, s33", "v_mov_b32 v27, s56", "v_mov_b32 v28, 0", "v_mul_u32_u24 v29, 384, v2",
      f"s_mov_b32 s47, {XG + side*8192}", "s_mul_i32 s57, s31, 384", "s_add_u32 s57, s57, s47")
    W = 24; G = 16
    c("wait until the partner V-wave is near the end of its stream, then fetch the group's softmax stats")
    A("s_lshl_b32 s61, s33, 2", f"s_add_u32 s61, s61, {L_FL+32}", "v_mov_b32 v20, s61", f"s_mov_b32 s59, {SPIN*20}")
    lab("L_twait")
    A("s_sleep 4", "ds_read_b32 v21, v20", "s_waitcnt lgkmcnt(0)", "v_readfirstlane_b32 s61, v21",
      "s_sub_u32 s59, s59, 1", "s_cbranch_scc1 L_twait_done", "s_cmp_eq_u32 s61, 0", "s_cbranch_scc1 L_twait")
    lab("L_twait_done")
    a(f"s_mov_b32 s59, {SPIN}")
    lab("L_wchk")
    A("buffer_load_dwordx4 v[32:35], v8, s[52:55], s71 offen sc1",
      "s_waitcnt vmcnt(0)", "v_cmp_ne_u32 vcc, s56, v33", "v_cmp_ne_u32 s[60:61], s56, v35", "s_or_b64 vcc, vcc, s[60:61]",
      "s_sub_u32 s59, s59, 1", "s_cbranch_scc1 L_wok", "s_cbranch_vccnz L_wchk")
    lab("L_wok")
    c("LDS word for the V-waves: 1 = the group spans several XCDs")
    A(f"v_and_b32 v{W+1}, 15, v34", f"v_cmp_ne_u32 vcc, s68, v{W+1}")
    if force: a("s_mov_b64 vcc, -1")
    A("s_cmp_lg_u64 vcc, 0", "s_cselect_b32 s62, 1, 0", f"v_mov_b32 v{W+1}, {L_FL+28}", f"v_mov_b32 v{W+2}, s62", f"ds_write_b32 v{W+1}, v{W+2}")
    c("weight of producer p: exp2((M_p - M) * c) / sum_p exp2((M_p - M) * c) * L_p")
    a(f"v_mov_b32 v{W+1}, v32")
    allred("max", [W+1], ["row_ror:8", "row_ror:4", "row_ror:2"], [W+2], [16, 32])
    A(f"v_sub_f32 v{W}, v32, v{W+1}", f"v_mul_f32 v{W}, s69, v{W}", f"v_exp_f32 v{W}, v{W}"); nop(1)
    a(f"v_mul_f32 v{W+1}, v{W}, v34")
    allred("add", [W+1], ["row_ror:8", "row_ror:4", "row_ror:2"], [W+2], [16, 32])
    a(f"v_rcp_f32 v{W+1}, v{W+1}"); nop(1)
    A(f"v_mul_f32 v{W}, v{W}, v{W+1}", f"s_mov_b32 s59, {SPIN}")
    a("s_waitcnt lgkmcnt(0)")
    a("s_barrier")
    c("first poll once this WG's own partials can have reached L2")
    a(f"s_sleep {odelay}")
    lab("L_opoll")
    A(f"buffer_load_dwordx4 v[{G}:{G+3}], v10, s[52:55], s70 offen sc1", "s_waitcnt vmcnt(0)")
    tagcheck([G], 20)
    A("v_cmp_ne_u32 vcc, 0, v20", "s_cbranch_vccnz L_oretry")
    lab("L_opoll_done")
    A("s_mov_b64 exec, -1", "s_cmp_eq_u32 s58, 1", "s_cbranch_scc1 L_flag")
    lab("L_noflag")
    A(f"v_pk_mul_f32 v[{G}:{G+1}], v[{G}:{G+1}], v[{W}:{W+1}] op_sel_hi:[1,0]", f"v_pk_mul_f32 v[{G+2}:{G+3}], v[{G+2}:{G+3}], v[{W}:{W+1}] op_sel_hi:[1,0]")
    nop(1)
    redscat(G)
    A(f"v_cvt_pk_bf16_f32 v{G}, v{G}, v{G}", f"ds_write_b16 v11, v{G}", "s_waitcnt lgkmcnt(0)")
    a("s_barrier")
    A("s_cmp_ge_u32 s45, 28", "s_cbranch_scc1 L_fin", f"s_mov_b32 s59, {SPIN}", "s_mov_b64 exec, 0xff")
    c("reducers: wait for the group flags so that the partials are read once, after they were written")
    lab("L_gpoll")
    A("buffer_load_dword v30, v29, s[52:55], s47 offen sc1", "s_sub_u32 s59, s59, 1", "s_cbranch_scc1 L_gdone", "s_waitcnt vmcnt(0)",
      "v_cmp_ne_u32 vcc, s56, v30", "s_mov_b64 exec, vcc", "s_cbranch_vccnz L_gpoll")
    lab("L_gdone")
    A("s_mov_b64 exec, -1", f"s_mov_b32 s59, {SPIN}", f"s_sleep {gdelay}")
    lab("L_fpoll")
    for n in range(4): a(f"buffer_load_dwordx4 v[{32+4*n}:{35+4*n}], v13, s[52:55], s{(44, 40, 41, 42)[n]} offen sc1")
    for n in range(4):
        a(f"s_waitcnt vmcnt({3-n})")
        b = 32 + 4 * n
        for k in range(4):
            if n == 0 and k == 0: a(f"v_xor_b32 v20, s64, v{b}")
            else: a(f"v_bitop3_b32 v20, v{b+k}, s{64+k}, v20 bitop3:0xbe")
        if n == 1: A("v_pk_add_f32 v[48:49], v[32:33], v[36:37]", "v_pk_add_f32 v[50:51], v[34:35], v[38:39]")
        if n >= 2: A(f"v_pk_add_f32 v[48:49], v[48:49], v[{b}:{b+1}]", f"v_pk_add_f32 v[50:51], v[50:51], v[{b+2}:{b+3}]")
    A(f"v_and_b32 v20, {TM:#x}, v20", "v_cmp_ne_u32 vcc, 0, v20", "s_cbranch_vccnz L_fretry")
    lab("L_fpoll_done")
    redscat(48)
    A("v_cvt_pk_bf16_f32 v48, v48, v48", "buffer_store_short v48, v14, s[48:51], s46 offen")
    c("every WG has read the epoch by now: advance it")
    A("s_cmp_lg_u32 s46, 0", "s_cbranch_scc1 L_fin", "s_mov_b64 exec, 1", "buffer_store_dword v27, v28, s[52:55], 0 offen", "s_branch L_fin")
    lab("L_flag")
    A("s_mov_b64 exec, 1", "buffer_store_dword v27, v28, s[52:55], s57 offen sc1", "s_mov_b64 exec, -1", "s_branch L_noflag")
    lab("L_oretry")
    A("s_mov_b64 exec, vcc", "s_bcnt1_i32_b64 s61, vcc", f"s_cmp_le_u32 s61, {othr}", "s_cbranch_scc1 L_opoll_ns", f"s_sleep {osleep}")
    lab("L_opoll_ns")
    A("s_sub_u32 s59, s59, 1", "s_cbranch_scc0 L_opoll", "s_branch L_opoll_done")
    lab("L_fretry")
    A("s_sub_u32 s59, s59, 1", "s_cbranch_scc0 L_fpoll", "s_branch L_fpoll_done")

    c("================================ V-waves ================================")
    lab("L_vwave")
    a("s_setprio 3")
    c("pull the kernel's code into this XCD's L2")
    A("s_cmp_ge_u32 s32, 3", "s_cbranch_scc1 L_nopf", "s_getpc_b64 s[60:61]")
    lab("L_pc")
    A(f"s_sub_u32 s60, s60, L_pc-{KN}", "s_subb_u32 s61, s61, 0", "s_lshl_b32 s62, s32, 2", "s_add_u32 s62, s62, s33", "s_lshl_b32 s62, s62, 10",
      "v_lshl_add_u32 v8, v2, 4, s62", f"v_min_u32 v8, L_end-{KN}-12, v8", "global_load_dwordx4 v[252:255], v8, s[60:61]")
    lab("L_nopf")
    A(f"v_mov_b32 v5, {L_FL}", "v_mov_b32 v8, 0", "v_mov_b32 v9, 0", "v_mov_b32 v10, 0", "v_mov_b32 v11, 0",
      "ds_write_b128 v5, v[8:11]", "ds_write_b128 v5, v[8:11] offset:16", "ds_write_b128 v5, v[8:11] offset:32")
    c("q projection piece: column block s70 (64 columns), s69 units of 32 rows starting at row s71/2")
    A("v_lshrrev_b32 v6, 3, v2", "v_and_b32 v7, 7, v2", "v_lshlrev_b32 v12, 13, v6", "v_lshl_add_u32 v12, v7, 4, v12", "v_lshlrev_b32 v13, 1, v6")
    ne_tab = sum(v << (8 * i) for i, v in enumerate(nE))
    A("s_lshr_b32 s63, s31, 1", "s_lshl_b32 s60, s63, 5", "s_add_u32 s60, s60, s32", "s_sub_u32 s60, s60, 16",
      "s_mul_i32 s61, s60, 147", "s_lshr_b32 s61, s61, 10", "s_mul_i32 s62, s61, 7", "s_sub_u32 s62, s60, s62",
      "s_cmp_ge_u32 s62, 3", "s_addc_u32 s62, s62, 0", "s_lshl_b32 s61, s61, 3", "s_add_u32 s70, s61, s62",
      "s_lshl_b32 s63, s63, 3", f"s_mov_b32 s61, {ne_tab:#x}", "s_lshr_b32 s61, s61, s63", "s_and_b32 s69, s61, 0xff",
      "s_lshl_b32 s61, s32, 3", "s_add_u32 s61, s61, 3",
      "s_cmp_lt_i32 s60, 0", "s_cselect_b32 s70, s61, s70", f"s_cselect_b32 s69, {nE3}, s69",
      "s_sub_u32 s61, 14, s69", "s_bitcmp1_b32 s31, 0", "s_cselect_b32 s71, s69, 0", "s_cselect_b32 s69, s61, s69",
      "s_lshl_b32 s71, s71, 6", "s_lshl_b32 s61, s33, 4", "s_add_u32 s71, s71, s61")
    A("s_and_b32 s61, s70, 63", "s_lshl_b32 s61, s61, 7", "s_lshl_b32 s62, s71, 12", "s_add_u32 s61, s61, s62",
      "s_mov_b32 s50, 896", "s_mov_b32 s51, 0x20000", "s_mov_b32 s46, 3670016", "s_mov_b32 s47, 0x20000")
    a("s_waitcnt lgkmcnt(0)")
    A("s_load_dword s56, s[28:29], 0",
      "s_cmp_ge_u32 s70, 64", "s_cselect_b32 s44, s20, s10", "s_cselect_b32 s45, s21, s11", "s_cselect_b32 s48, s14, s4", "s_cselect_b32 s49, s15, s5")
    a("s_barrier                 ; B0")
    WQ = 96; XR = 24
    NU = max(max(nE), 14 - min(nE), nE3, 14 - nE3)
    for n in range(NU):
        A(f"s_cmp_le_u32 s69, {n}", "s_cbranch_scc1 L_wqdone",
          f"buffer_load_dwordx4 v[{WQ+4*n}:{WQ+4*n+3}], v12, s[44:47], s61 offen nt", f"buffer_load_ushort v{XR+n}, v13, s[48:51], s71 offen offset:{n*64}")
        if n < NU - 1: a(f"s_add_u32 s61, s61, {32*8192}")
    lab("L_wqdone")
    c("V lane layout: lane (g, c) reads key g, 16 B chunk c; Wo: rows 8g+t, 128 columns per wave (64 for wave 3)")
    A("s_mov_b32 s36, s8", "s_mov_b32 s37, s9", "s_mov_b32 s40, s18", "s_mov_b32 s41, s19", "s_mov_b32 s52, s28", "s_mov_b32 s53, s29")
    A("v_lshlrev_b32 v14, 9, v3", "v_lshl_add_u32 v14, v4, 4, v14")
    A("s_cmp_ge_u32 s32, 16", "s_cselect_b32 s44, s22, s12", "s_cselect_b32 s45, s23, s13")
    A("s_and_b32 s48, s32, 15", "s_lshl_b32 s48, s48, 5", "s_lshl_b32 s62, s31, 9", "s_add_u32 s48, s48, s62", "s_mul_i32 s48, s48, 896",
      "s_lshl_b32 s62, s33, 8", "s_add_u32 s48, s48, s62", "s_add_u32 s49, s48, 3584",
      "s_cmp_eq_u32 s33, 3", "s_cselect_b32 s62, 7, 15", "s_cselect_b32 s58, 0x00ff00ff, -1")
    A("v_mul_u32_u24 v15, 7168, v3", "v_lshl_add_u32 v15, v4, 4, v15", "v_cmp_lt_u32 vcc, s62, v4", "v_mov_b32 v8, 0x40000000"); nop(1)
    a("v_cndmask_b32 v15, v15, v8, vcc")
    a("s_waitcnt lgkmcnt(0)")
    maketag()
    AC = 16
    for k in range(8): a(f"v_mov_b32 v{AC+k}, 0")
    a("s_waitcnt vmcnt(0)")
    for n in range(NU):
        A(f"s_cmp_le_u32 s69, {n}", "s_cbranch_scc1 L_fmadone", f"v_lshlrev_b32 v{XR+n}, 16, v{XR+n}")
        for k in range(4):
            w = WQ + 4 * n + k
            A(f"v_lshlrev_b32 v8, 16, v{w}", f"v_and_b32 v9, 0xffff0000, v{w}", f"v_fmac_f32 v{AC+2*k}, v8, v{XR+n}", f"v_fmac_f32 v{AC+2*k+1}, v9, v{XR+n}")
    lab("L_fmadone")
    allred("add", [AC + k for k in range(8)], ["row_ror:8"], [], [])
    A("s_lshl_b32 s61, s33, 10", f"s_add_u32 s61, s61, {L_QP}", "v_lshlrev_b32 v8, 8, v3", "v_lshl_add_u32 v8, v7, 5, v8", "v_add_u32 v8, s61, v8")
    setexec(0x00ff00ff, 0x00ff00ff)
    A(f"ds_write_b128 v8, v[{AC}:{AC+3}]", f"ds_write_b128 v8, v[{AC+4}:{AC+7}] offset:16")
    A("s_mov_b64 exec, 1", "v_mov_b32 v9, 1", "s_waitcnt lgkmcnt(0)", "ds_add_rtn_u32 v10, v5, v9", "s_waitcnt lgkmcnt(0)",
      "s_mov_b64 exec, -1", "v_readfirstlane_b32 s61, v10", "s_cmp_lg_u32 s61, 3", "s_cbranch_scc1 L_vload")
    c("last V-wave: sum the 16 partial rows and publish this piece of q")
    A("v_lshlrev_b32 v8, 10, v3", "v_lshl_add_u32 v8, v4, 4, v8")
    for k in range(4): a(f"ds_read_b128 v[{16+4*k}:{19+4*k}], v8 offset:{L_QP + k*256}")
    a("s_waitcnt lgkmcnt(0)")
    for k in range(4): A(f"v_add_f32 v{16+k}, v{16+k}, v{20+k}", f"v_add_f32 v{24+k}, v{24+k}, v{28+k}")
    for k in range(4): a(f"v_add_f32 v{16+k}, v{16+k}, v{24+k}")
    allred("add", [16, 17, 18, 19], [], [20, 21, 22, 23], [16, 32])
    A("s_bfe_u32 s61, s70, 0x30003", "s_lshl_b32 s61, s61, 13", "s_lshr_b32 s62, s70, 6", "s_lshl_b32 s62, s62, 12", "s_add_u32 s61, s61, s62",
      "s_and_b32 s62, s70, 7", "s_lshl_b32 s62, s62, 8", "s_add_u32 s61, s61, s62", "s_and_b32 s62, s31, 1", "s_lshl_b32 s62, s62, 11", "s_add_u32 s61, s61, s62",
      f"s_add_u32 s61, s61, {X1}", "v_lshlrev_b32 v8, 4, v4", "v_mov_b32 v9, 0xff")
    pack(16, 16, 9)
    setexec(0xffff, 0)
    A("buffer_store_dwordx4 v[16:19], v8, s[52:55], s61 offen sc1", "s_mov_b64 exec, -1")
    lab("L_vload")
    a("s_setprio 1")
    VB = 96; WB = 16; PB_ = 48; OD = 76; AB = 68
    vl = []; reg = VB
    for br, npc, srd, so in ((0, 16, 36, 34), (1, 4, 40, 35)):
        for i in range(npc):
            for hf in range(2):
                pre = [f"s_xor_b32 s57, s{so}, {i << 13}"] if hf == 0 else []
                vl.append(pre + [f"buffer_load_dwordx4 v[{reg}:{reg+3}], v14, s[{srd}:{srd+3}], s57 offen offset:{hf*256} nt"]); reg += 4
    wo = [[f"buffer_load_dwordx4 v[{WB+4*t}:{WB+4*t+3}], v15, s[44:47], s{48 if t < 4 else 49} offen offset:{(t&3)*896} nt"] for t in range(8)]
    issue = vl[:2*wo_at] + wo[:wo_pre] + vl[2*wo_at:] + wo[wo_pre:]
    vpos = [k if k < 2*wo_at else k + wo_pre for k in range(40)]
    c("v8..v11: masks that place p at position lane&7 of the A row (head, i'); addresses for the tail")
    A("v_and_b32 v12, 1, v2", "v_lshlrev_b32 v12, 4, v12", "v_mov_b32 v13, 0xffff", "v_lshlrev_b32 v12, v12, v13", "v_bfe_u32 v13, v2, 1, 2")
    for j in range(4):
        a(f"v_cmp_eq_u32 vcc, {j}, v13"); nop(2); a(f"v_cndmask_b32 v{8+j}, 0, v12, vcc")
    A("s_lshl_b32 s61, s33, 12", "v_lshl_add_u32 v92, v2, 4, s61", "s_lshl_b32 s61, s33, 10", "v_lshl_add_u32 v93, v2, 4, s61",
      "s_lshr_b32 s61, s33, 1", "s_lshl_b32 s62, s61, 5", f"s_add_u32 s62, s62, {L_C}", "v_lshrrev_b32 v12, 5, v2", "v_lshl_add_u32 v94, v12, 4, s62",
      "s_lshl_b32 s61, s61, 4", "s_and_b32 s62, s33, 1", "s_lshl_b32 s62, s62, 2", "s_add_u32 s61, s61, s62",
      "v_lshrrev_b32 v13, 2, v4", "v_lshl_add_u32 v13, v12, 3, v13", "v_add_u32 v13, s61, v13",
      "v_add_u32 v1, s32, v13", "v_and_b32 v1, 31, v1", "v_lshlrev_b32 v1, 7, v1", "v_lshl_add_u32 v95, v13, 12, v1",
      "v_and_b32 v13, 3, v2", "v_lshl_add_u32 v95, v13, 5, v95", "v_and_b32 v13, 1, v3", "v_lshl_add_u32 v95, v13, 4, v95",
      "s_lshl_b32 s61, s31, 17", f"s_add_u32 s70, s61, {X3}", f"v_mov_b32 v5, {TM:#x}",
      "s_lshr_b32 s61, s32, 4", "s_lshl_b32 s61, s61, 7", "s_lshl_b32 s62, s31, 4", "s_add_u32 s61, s61, s62", "s_and_b32 s62, s32, 15", "s_add_u32 s61, s61, s62",
      "s_and_b32 s62, s61, 3", "s_lshr_b32 s61, s61, 2", "s_lshl_b32 s61, s61, 14", "s_mul_i32 s62, s62, 1920", "s_add_u32 s61, s61, s62",
      "s_lshl_b32 s62, s33, 9", "s_add_u32 s61, s61, s62", f"s_add_u32 s71, s61, {X4 + side*8192}",
      "v_lshlrev_b32 v6, 5, v4", "v_lshl_add_u32 v6, v13, 4, v6", "v_lshlrev_b32 v7, 4, v2")
    a("s_barrier                 ; B1")
    def pwait():
        c("p of the partner K-wave")
        A("s_lshl_b32 s61, s33, 2", f"s_add_u32 s61, s61, {L_FL+8}", "v_mov_b32 v12, s61", f"s_mov_b32 s59, {SPIN*100}")
        lab("L_pwait")
        A("ds_read_b32 v13, v12", "s_waitcnt lgkmcnt(0)", "v_readfirstlane_b32 s69, v13",
          "s_sub_u32 s59, s59, 1", "s_cbranch_scc1 L_pwait_done", "s_cmp_eq_u32 s69, 0", "s_cbranch_scc1 L_pwait")
        lab("L_pwait_done")
        A("v_bfe_u32 v12, v2, 3, 1", "v_lshl_add_u32 v12, v12, 2, v3", "s_lshl_b32 s61, s33, 10", f"s_add_u32 s61, s61, {L_P}",
          "v_lshl_add_u32 v13, v12, 6, s61", "v_lshl_add_u32 v12, v12, 4, s61")
        for k in range(4): a(f"ds_read_b128 v[{PB_+4*k}:{PB_+4*k+3}], v13 offset:{16*k}")
        A(f"ds_read_b128 v[{PB_+16}:{PB_+19}], v12 offset:512", "s_waitcnt lgkmcnt(0)")
    def pv(step, issued):
        br, b = (0, step) if step < 16 else (1, step - 16)
        n = b >> 1; t = b & 1
        p = PB_ + (t * 8 + n if br == 0 else 16 + t * 2 + n)
        ab = AB + (step & 1) * 4
        for j in range(4): a(f"v_and_b32 v{ab+j}, v{p}, v{8+j}")
        A(f"s_waitcnt vmcnt({issued - 1 - vpos[2*step+1]})", "s_nop 0")
        for hf in range(2):
            d = OD + (br * 2 + hf) * 4; r = VB + (2 * step + hf) * 4
            cc = "0" if b == 0 else f"v[{d}:{d+3}]"
            a(f"v_mfma_f32_16x16x32_bf16 v[{d}:{d+3}], v[{ab}:{ab+3}], v[{r}:{r+3}], {cc}")
        if step == 17:
            for k in range(2): a(f"ds_write_b128 v92, v[{OD+4*k}:{OD+4*k+3}] offset:{L_OP + k*1024}")
    ns = 0; havep = False
    for ni0, ins in enumerate(issue):
        if ni0 >= NV: a(f"s_waitcnt vmcnt({NV-1})")
        A(*ins); ni = ni0 + 1
        if ni == trig: A("s_lshl_b32 s61, s33, 2", f"s_add_u32 s61, s61, {L_FL+32}", "v_mov_b32 v12, s61", "ds_write_b32 v12, v12")
        if ni == 48: stamp(3)
        if ni == 2 * p0: pwait(); havep = True
        if havep and ns < 20 and vpos[2*ns+1] < ni - NV:
            pv(ns, ni); ns += 1
    while ns < 20:
        pv(ns, 48); ns += 1
    nop(7)
    for k in range(2, 4): a(f"ds_write_b128 v92, v[{OD+4*k}:{OD+4*k+3}] offset:{L_OP + k*1024}")
    a("s_waitcnt lgkmcnt(0)")
    a("s_barrier                 ; B3")
    c("combine the 4 waves' partials (rescaled to the WG max) and publish X3")
    T = 96
    A(f"ds_read_b32 v13, v7 offset:{L_FL+28}", f"ds_read_b128 v[{T+16}:{T+19}], v94")
    for k in range(4): a(f"ds_read_b128 v[{T+4*k}:{T+4*k+3}], v93 offset:{L_OP + k*4096}")
    for k in range(4):
        a(f"s_waitcnt lgkmcnt({3-k})")
        if k == 0: a("v_readfirstlane_b32 s61, v13")
        if k == 1: a("s_cmp_eq_u32 s61, 0")
        cp = T + 16 + (k & 2); sel = k & 1
        for m in (0, 2):
            if k == 0: a(f"v_pk_mul_f32 v[{T+20+m}:{T+21+m}], v[{T+m}:{T+m+1}], v[{cp}:{cp+1}] op_sel:[0,{sel}] op_sel_hi:[1,{sel}]")
            else: a(f"v_pk_fma_f32 v[{T+20+m}:{T+21+m}], v[{T+4*k+m}:{T+4*k+m+1}], v[{cp}:{cp+1}], v[{T+20+m}:{T+21+m}] op_sel:[0,{sel},0] op_sel_hi:[1,{sel},1]")
    pack(T + 20, T + 20, 5)
    a("s_cbranch_scc0 L_x3slow")
    a(f"buffer_store_dwordx4 v[{T+20}:{T+23}], v95, s[52:55], s70 offen")
    lab("L_x3done")
    a("s_waitcnt vmcnt(1)")
    a("s_barrier                 ; B4")
    c("out projection of this WG's 32 rows, publish X4")
    AO = T + 32
    for t in range(8): a(f"ds_read_b128 v[{AO+4*t}:{AO+4*t+3}], v7 offset:{L_AO + t*1024}")
    for t in range(8):
        a(f"s_waitcnt lgkmcnt({7-t})")
        cc = "0" if t == 0 else f"v[{T}:{T+3}]"
        a(f"v_mfma_f32_16x16x32_bf16 v[{T}:{T+3}], v[{AO+4*t}:{AO+4*t+3}], v[{WB+4*t}:{WB+4*t+3}], {cc}")
    A("s_mov_b32 exec_lo, s58", "s_mov_b32 exec_hi, 0")
    nop(6)
    pack(T + 4, T, 5)
    a(f"buffer_store_dwordx4 v[{T+4}:{T+7}], v6, s[52:55], s71 offen sc1")
    lab("L_fin")
    if stamps:
        a("s_mov_b64 exec, -1")
        stamp(9)
        a("s_waitcnt lgkmcnt(0)")
        A("s_lshl_b32 s61, s2, 3", "s_add_u32 s61, s61, s30", "s_lshl_b32 s61, s61, 6", f"s_add_u32 s61, s61, {STAMP}")
        for k in range(10): a(f"v_mov_b32 v{32+k}, s{72+2*k}")
        A("s_getreg_b32 s62, hwreg(HW_REG_XCC_ID)", "v_mov_b32 v42, s62", "v_mov_b32 v43, s59", "v_mov_b32 v1, 0", "s_mov_b64 exec, 1")
        for k in range(3): a(f"buffer_store_dwordx4 v[{32+4*k}:{35+4*k}], v1, s[52:55], s61 offen offset:{16*k}")
    lab("L_end"); a("s_endpgm")
    lab("L_x3slow")
    A(f"buffer_store_dwordx4 v[{T+20}:{T+23}], v95, s[52:55], s70 offen sc1", "s_branch L_x3done")
    L.append('.section .rodata,"a"'); L.append(".p2align 6"); L.append(f".amdhsa_kernel {KN}")
    for s in ("next_free_vgpr 256", "next_free_sgpr 96", "accum_offset 256", "group_segment_fixed_size 0", "kernarg_size 104", "user_sgpr_count 2", "user_sgpr_kernarg_segment_ptr 1", "system_sgpr_workgroup_id_x 1"):
        L.append("  .amdhsa_" + s)
    L.append(".end_amdhsa_kernel")
    open(name, "w").write("\n".join(L) + "\n")

if __name__ == "__main__":
    gen("G.s"); gen("G_rm.s", remap=True)
    names = []
    for sd in (0, 1):
        for d in (4, 5, 6, 7): gen(f"G{sd}g{d}_l.s", stamps=True, side=sd, gdelay=d); names.append(f"G{sd}g{d}_l.s")
    print(" ".join(names))
```

```python
import sys, math, struct
KN = "concat_heads__gqa_block_cached__sliding_block_cached__decode_kernel"
HDR = open("concat_heads__gqa_block_cached__sliding_block_cached__decode.s.ref").read().split("; Override")[0]

X2 = 0x4000
X1 = 0x10000
X3 = 0x40000
X4 = 0x200000
XG = 0x300000
STAMP = 0x8000000
L_OP = 0; L_QP = 0; L_P = 0x4000; L_Q = 0x5000; L_C = 0x5800; L_FL = 0x5840; L_ML = 0x5900; L_AO = 0x6000
LDS_BYTES = 0x8000
SPIN = 20000
DPP = "row_mask:0xf bank_mask:0xf"
TB = 10; TM = (1 << TB) - 1

DOC = """; ---------------------------------------------------------------------------------------------
; ---------------------------------------------------------------------------------------------"""

def gen(name, stamps=False, NK=7, NV=7, nE=(9, 9, 9, 9), nE3=7, p0=12, wo_at=16, wo_pre=1, trig=30, qsleep=4, osleep=4, othr=8,
        odelay=11, gdelay=5, remap=False, force=False, side=0, ob=0, vflag=False, NV2=0, late=8, rs=0, mini=False):
    L = []
    def a(s): L.append("  " + s)
    def A(*ss):
        for s in ss: a(s)
    def c(s): L.append("  ; " + s)
    def lab(s): L.append(s + ":")
    def nop(n): a(f"s_nop {n-1}")
    def stamp(k):
        if stamps and k in (0, 3, 9): a(f"s_memrealtime s[{72+2*k}:{73+2*k}]")
    def setexec(lo, hi): A(f"s_mov_b32 exec_lo, {lo:#x}", f"s_mov_b32 exec_hi, {hi:#x}")
    def allred(op, regs, dpps, tmp, swaps):
        for r in dpps:
            nop(2)
            for x in regs: a(f"v_{op}_f32_dpp v{x}, v{x}, v{x} {r} {DPP}")
        for sw in swaps:
            for x, t in zip(regs, tmp): a(f"v_mov_b32 v{t}, v{x}")
            nop(2)
            for x, t in zip(regs, tmp): a(f"v_permlane{sw}_swap_b32 v{x}, v{t}")
            nop(1)
            for x, t in zip(regs, tmp): a(f"v_{op}_f32 v{x}, v{x}, v{t}")
    def maketag():
        c("s56 = launch tag (LCG step of the epoch word), s64..s67 = 10-bit per-dword tags")
        A("s_mul_i32 s56, s56, 0x9E3779B1", "s_add_u32 s56, s56, 0x7F4A7C15", "s_mul_i32 s67, s56, 0x85EBCA6B",
          f"s_and_b32 s64, s56, {TM:#x}", f"s_bfe_u32 s65, s56, {(TB << 16) | 11:#x}", f"s_lshr_b32 s66, s56, {32-TB}", f"s_lshr_b32 s67, s67, {32-TB}")
    def tagcheck(bases, t, m=TM):
        first = True
        for b in bases:
            for k in range(4):
                if first: a(f"v_xor_b32 v{t}, s{64+k}, v{b+k}"); first = False
                else: a(f"v_bitop3_b32 v{t}, v{b+k}, s{64+k}, v{t} bitop3:0xbe")
        a(f"v_and_b32 v{t}, {m:#x}, v{t}")
    def pack(dst, src, m):
        for k in range(4): a(f"v_bfi_b32 v{dst+k}, v{m}, s{64+k}, v{src+k}")
    def redscat(g):
        A(f"v_permlane32_swap_b32 v{g}, v{g+1}", f"v_permlane32_swap_b32 v{g+2}, v{g+3}", f"v_add_f32 v{g}, v{g}, v{g+1}", f"v_add_f32 v{g+2}, v{g+2}, v{g+3}"); nop(2)
        a(f"v_permlane16_swap_b32 v{g}, v{g+2}"); nop(1)
        a(f"v_add_f32 v{g}, v{g}, v{g+2}")
        allred("add", [g], ["row_ror:8", "row_ror:4", "row_ror:2"], [], [])
    X1Q, X2Q = "quad_perm:[1,0,3,2]", "quad_perm:[2,3,0,1]"

    L.append(HDR.rstrip())
    L.append(f"; @launch grid=(256,1,1) block=(512,1,1) lds={LDS_BYTES}")
    L.append(DOC)
    L.append('.amdgcn_target "amdgcn-amd-amdhsa--gfx950"')
    L.append(".text"); L.append(f".globl {KN}"); L.append(".p2align 8"); L.append(f".type {KN},@function"); lab(KN)
    A("s_cmp_ge_u32 s2, 256", "s_cbranch_scc1 L_end")
    A("s_load_dwordx16 s[4:19], s[0:1], 0", "s_load_dwordx8 s[20:27], s[0:1], 64", "s_load_dwordx2 s[28:29], s[0:1], 96")
    if remap: A("s_and_b32 s3, s2, 31", "s_lshl_b32 s3, s3, 3", "s_lshr_b32 s2, s2, 5", "s_or_b32 s2, s2, s3")
    stamp(0)
    c("v2 = lane, v3 = lane>>4, v4 = lane&15; s30 = wave, s31 = h, s32 = s, s33 = wave&3")
    A("v_lshrrev_b32 v1, 6, v0", "v_and_b32 v2, 63, v0", "s_and_b32 s31, s2, 7", "v_readfirstlane_b32 s30, v1", "s_lshr_b32 s32, s2, 3",
      "v_lshrrev_b32 v3, 4, v2", "v_and_b32 v4, 15, v2", "s_and_b32 s33, s30, 3")
    c("s34/s35 = K/V byte offsets of branch A/B; 2 KB pieces interleaved over the 4 waves, order xor-scrambled per WG")
    A("s_lshl_b32 s57, s31, 22", "s_lshl_b32 s58, s33, 11", "s_add_u32 s57, s57, s58", "s_mul_i32 s58, s2, 0x9e3779b1", "s_lshr_b32 s58, s58, 7",
      "s_lshl_b32 s35, s32, 15", "s_add_u32 s35, s35, s57", "s_and_b32 s59, s58, 0x6000", "s_add_u32 s35, s35, s59", "s_add_u32 s35, s35, 0x300000",
      "s_lshl_b32 s34, s32, 17", "s_add_u32 s34, s34, s57", "s_and_b32 s59, s58, 0x1e000", "s_add_u32 s34, s34, s59")
    A("s_mov_b32 s38, 0x2000000", "s_mov_b32 s39, 0x20000", "s_mov_b32 s42, 0x2000000", "s_mov_b32 s43, 0x20000",
      "s_mov_b32 s54, 0x10000000", "s_mov_b32 s55, 0x20000")
    A("s_cmp_ge_u32 s30, 4", "s_cbranch_scc1 L_vwave")

    c("================================ K-waves ================================")
    KB = 96
    a("s_setprio 1")
    c("K lane layout: lane (g, key4, sub) reads key4*512 + g*64 + sub*16 (+256 for the second half row)")
    A("v_bfe_u32 v5, v2, 2, 2", "v_and_b32 v6, 3, v2", "v_lshlrev_b32 v7, 6, v3", "v_lshl_add_u32 v7, v6, 4, v7", "v_lshl_add_u32 v7, v5, 9, v7")
    a("s_waitcnt lgkmcnt(0)")
    A("s_mov_b32 s36, s6", "s_mov_b32 s37, s7", "s_mov_b32 s40, s16", "s_mov_b32 s41, s17")
    reg = KB; cnt = 0
    for br, npc, srd, so in ((0, 16, 36, 34), (1, 4, 40, 35)):
        for i in range(npc):
            a(f"s_xor_b32 s57, s{so}, {i << 13}")
            for j in range(2):
                if cnt >= NK: a(f"s_waitcnt vmcnt({NK-1})")
                a(f"buffer_load_dwordx4 v[{reg}:{reg+3}], v7, s[{srd}:{srd+3}], s57 offen offset:{j*256} nt"); reg += 4; cnt += 1
            if cnt == 4:
                c("epoch word; bring this WG's X3 lines into L2 (value unused)")
                A("s_load_dword s56, s[28:29], 0", "s_mov_b32 s52, s28", "s_mov_b32 s53, s29",
                  "s_lshl_b32 s61, s31, 5", "s_add_u32 s61, s61, s32", "s_lshl_b32 s61, s61, 12", "s_lshl_b32 s62, s33, 10", "s_add_u32 s61, s61, s62", f"s_add_u32 s61, s61, {X3}",
                  "v_lshlrev_b32 v8, 4, v2", "buffer_load_dwordx4 v[12:15], v8, s[52:55], s61 offen sc1", "s_barrier")
    a("s_barrier")
    c("gather q (wave = branch*2+head): add the two partials, round to bf16, share through LDS")
    A("v_bfe_u32 v8, v2, 2, 1", "v_lshlrev_b32 v8, 9, v8", "v_lshl_add_u32 v8, v3, 6, v8", "v_lshl_add_u32 v8, v6, 4, v8", f"v_mov_b32 v9, {L_FL+24}")
    A("v_lshlrev_b32 v12, 4, v2", "s_lshl_b32 s58, s31, 13", "s_lshr_b32 s61, s33, 1", "s_lshl_b32 s61, s61, 12", "s_add_u32 s58, s58, s61",
      "s_and_b32 s61, s33, 1", "s_lshl_b32 s61, s61, 10", "s_add_u32 s58, s58, s61", f"s_add_u32 s58, s58, {X1}",
      "s_lshl_b32 s61, s33, 9", f"s_add_u32 s61, s61, {L_Q}", "v_lshl_add_u32 v13, v2, 3, s61", "v_mov_b32 v14, 1",
      "s_getreg_b32 s68, hwreg(HW_REG_XCC_ID, 0, 4)")
    a("s_waitcnt lgkmcnt(0)")
    maketag()
    A(f"s_mov_b32 s59, {SPIN}", "s_branch L_qpoll1")
    lab("L_qpoll")
    a(f"s_sleep {qsleep}")
    lab("L_qpoll1")
    A("buffer_load_dwordx4 v[16:19], v12, s[52:55], s58 offen sc1", "buffer_load_dwordx4 v[20:23], v12, s[52:55], s58 offen offset:2048 sc1", "s_waitcnt vmcnt(0)")
    tagcheck([16, 20], 10, 0xff)
    A("v_cmp_ne_u32 vcc, 0, v10", "s_sub_u32 s59, s59, 1", "s_cbranch_scc1 L_qpoll_done", "s_cbranch_vccnz L_qpoll")
    lab("L_qpoll_done")
    for k in range(8): a(f"v_and_b32 v{16+k}, 0xffffff00, v{16+k}")
    for k in range(4): a(f"v_add_f32 v{16+k}, v{16+k}, v{20+k}")
    A("v_cvt_pk_bf16_f32 v16, v16, v17", "v_cvt_pk_bf16_f32 v17, v18, v19", "ds_write_b64 v13, v[16:17]")
    A("s_mov_b64 exec, 1", "s_waitcnt lgkmcnt(0)", "ds_add_u32 v9, v14", "s_mov_b64 exec, -1", f"s_mov_b32 s59, {SPIN*100}")
    lab("L_qwait")
    A("ds_read_b32 v10, v9", "s_waitcnt lgkmcnt(0)", "v_readfirstlane_b32 s61, v10",
      "s_sub_u32 s59, s59, 1", "s_cbranch_scc1 L_qwait_done", "s_cmp_lt_u32 s61, 4", "s_cbranch_scc1 L_qwait")
    lab("L_qwait_done")
    QG = 16; FB = 48; DB = 8; SB = 80
    c("A operands: row (t, head, sub') = 8 q values; rows of the other key block t are zero")
    for br in range(2):
        for j in range(2):
            r = QG + (br * 2 + j) * 4
            a(f"ds_read_b128 v[{r}:{r+3}], v8 offset:{L_Q + br*1024 + j*256}")
    A("s_mov_b32 s60, 0x00ff00ff", "s_mov_b32 s61, 0x00ff00ff", "s_mov_b32 s62, 0xff00ff00", "s_mov_b32 s63, 0xff00ff00")
    a("s_waitcnt lgkmcnt(0)")
    for br in range(2):
        for j in range(2):
            for t in range(2):
                for k in range(4):
                    a(f"v_cndmask_b32 v{FB + ((br*2+j)*2+t)*4 + k}, 0, v{QG + (br*2+j)*4 + k}, s[{60+2*t}:{61+2*t}]")
    nop(2)
    c("QK^T: 8 keys per accumulator; the score is the sum of the diagonal sub == sub' inside each quad")
    reg = KB
    for br, ngrp in ((0, 8), (1, 2)):
        for n in range(ngrp):
            d = DB + (br * 8 + n) * 4
            first = True
            for t in range(2):
                for j in range(2):
                    f = FB + ((br * 2 + j) * 2 + t) * 4
                    cc = "0" if first else f"v[{d}:{d+3}]"
                    a(f"v_mfma_f32_16x16x32_bf16 v[{d}:{d+3}], v[{f}:{f+3}], v[{reg}:{reg+3}], {cc}")
                    first = False; reg += 4
    nop(8)
    for k in range(4):
        for n in range(10):
            d = DB + n * 4
            if k == 0: a(f"v_mov_b32_dpp v{SB+n}, v{d} quad_perm:[0,0,0,0] {DPP}")
            else: a(f"v_add_f32_dpp v{SB+n}, v{d+k}, v{SB+n} quad_perm:[{k},{k},{k},{k}] {DPP}")
    c("scores are bf16 in the reference; wave-local max (v8: A, v10: B), p = exp2((s - max) * log2e/16)")
    for n in range(10): a(f"v_cvt_pk_bf16_f32 v{SB+n}, v{SB+n}, v{SB+n}")
    for n in range(10): a(f"v_and_b32 v{SB+n}, 0xffff0000, v{SB+n}")
    A(f"v_max3_f32 v8, v{SB}, v{SB+1}, v{SB+2}", f"v_max_f32 v10, v{SB+8}, v{SB+9}",
      f"v_max3_f32 v8, v8, v{SB+3}, v{SB+4}", f"v_max3_f32 v8, v8, v{SB+5}, v{SB+6}", f"v_max_f32 v8, v8, v{SB+7}")
    allred("max", [8, 10], ["row_ror:4", "row_ror:8"], [12, 13], [32])
    cb = struct.unpack("<I", struct.pack("<f", math.log2(math.e) / 16.0))[0]
    a(f"s_mov_b32 s69, {cb:#x}")
    for n in range(10): a(f"v_sub_f32 v{SB+n}, v{SB+n}, v{8 if n < 8 else 10}")
    for n in range(10): a(f"v_mul_f32 v{SB+n}, s69, v{SB+n}")
    for n in range(10): a(f"v_exp_f32 v{SB+n}, v{SB+n}")
    nop(1)
    for n in range(10): a(f"v_cvt_pk_bf16_f32 v{16+n}, v{SB+n}, v{SB+n}")
    A("v_bfe_u32 v26, v2, 2, 3", "v_lshrrev_b32 v27, 5, v2", "s_lshl_b32 s61, s33, 10", f"s_add_u32 s61, s61, {L_P}",
      "v_lshlrev_b32 v28, 2, v27", "v_lshl_add_u32 v28, v26, 3, v28", "v_lshl_add_u32 v29, v28, 3, s61", "v_lshl_add_u32 v30, v28, 1, s61")
    setexec(0x11111111, 0x11111111)
    A("ds_write_b128 v29, v[16:19]", "ds_write_b128 v29, v[20:23] offset:16", "ds_write_b64 v30, v[24:25] offset:512")
    a("s_mov_b64 exec, -1")
    A(f"v_add_f32 v9, v{SB}, v{SB+1}", f"v_add_f32 v11, v{SB+8}, v{SB+9}")
    for n in range(2, 8): a(f"v_add_f32 v9, v9, v{SB+n}")
    a("s_waitcnt lgkmcnt(0)")
    A("s_lshl_b32 s61, s33, 2", f"s_add_u32 s61, s61, {L_FL+8}", "v_mov_b32 v31, s61", "v_mov_b32 v32, 1", "ds_write_b32 v31, v32")
    allred("add", [9, 11], ["row_ror:4", "row_ror:8"], [12, 13], [32])
    A("v_and_b32 v20, 16, v2", "s_lshl_b32 s61, s33, 3", f"s_add_u32 s61, s61, {L_ML}", "v_lshl_add_u32 v20, v20, 1, s61")
    setexec(0x00010001, 0)
    A("ds_write_b64 v20, v[8:9]", "ds_write_b64 v20, v[10:11] offset:64")
    A("s_mov_b64 exec, 1", f"v_mov_b32 v21, {L_FL+4}", "s_waitcnt lgkmcnt(0)", "ds_add_rtn_u32 v22, v21, v32", "s_waitcnt lgkmcnt(0)",
      "s_mov_b64 exec, -1", "v_readfirstlane_b32 s61, v22")
    A("s_cmp_lg_u32 s61, 3", "s_cbranch_scc1 L_kjoin")
    c("last K-wave: WG max / sum, per-wave rescale factors -> LDS, publish X2")
    A("v_lshlrev_b32 v20, 3, v4", f"ds_read_b64 v[8:9], v20 offset:{L_ML}", "s_waitcnt lgkmcnt(0)", "v_mov_b32 v10, v8")
    allred("max", [10], [X1Q, X2Q], [], [])
    A("v_sub_f32 v8, v8, v10", "v_mul_f32 v8, s69, v8", "v_exp_f32 v8, v8", "v_lshlrev_b32 v20, 2, v4", "v_mul_f32 v11, v8, v9", f"ds_write_b32 v20, v8 offset:{L_C}")
    allred("add", [11], [X1Q, X2Q], [], [])
    A("v_mov_b32 v16, v10", "v_mov_b32 v17, s56", "v_and_b32 v18, -16, v11", "v_or_b32 v18, s68, v18", "v_mov_b32 v19, s56")
    A("s_lshl_b32 s57, s31, 11", "s_lshl_b32 s61, s32, 4", "s_add_u32 s61, s61, s57", f"s_add_u32 s61, s61, {X2}")
    A("v_and_b32 v21, 12, v2", "v_lshlrev_b32 v21, 7, v21")
    setexec(0x1111, 0)
    a("buffer_store_dwordx4 v[16:19], v21, s[52:55], s61 offen sc1")
    a("s_mov_b64 exec, -1")
    nop(1)
    lab("L_kjoin")
    c("zero this wave's quarter of the out-projection A image; addresses for the tail")
    A("v_mov_b32 v16, 0", "v_mov_b32 v17, 0", "v_mov_b32 v18, 0", "v_mov_b32 v19, 0", "s_lshl_b32 s61, s33, 11", "v_lshl_add_u32 v20, v2, 4, s61",
      f"ds_write_b128 v20, v[16:19] offset:{L_AO}", f"ds_write_b128 v20, v[16:19] offset:{L_AO+1024}")
    A("s_lshl_b32 s61, s31, 5", "s_add_u32 s61, s61, s32", "s_lshl_b32 s61, s61, 12", "s_lshl_b32 s62, s33, 5", "s_add_u32 s61, s61, s62", f"s_add_u32 s70, s61, {X3}",
      "v_lshrrev_b32 v8, 1, v2", "v_and_b32 v9, 1, v2", "v_lshlrev_b32 v10, 7, v8", "v_lshl_add_u32 v10, v9, 4, v10",
      "v_subrev_u32 v8, s32, v8", "v_and_b32 v8, 31, v8", "v_lshlrev_b32 v8, 4, v8",
      "s_lshl_b32 s61, s31, 11", "s_lshr_b32 s62, s32, 3", "s_lshl_b32 s62, s62, 9", "s_add_u32 s61, s61, s62", f"s_add_u32 s71, s61, {X2}")
    A("v_lshrrev_b32 v11, 5, v2", "v_bfe_u32 v12, v2, 4, 1", "v_lshl_add_u32 v11, v12, 1, v11", "v_lshl_add_u32 v11, v9, 2, v11", "v_lshlrev_b32 v14, 1, v11", "v_lshlrev_b32 v11, 10, v11",
      "v_bfe_u32 v12, v2, 1, 3", "v_lshl_add_u32 v14, v12, 21, v14", "v_mul_u32_u24 v12, 18, v12", "v_add_u32 v11, v11, v12", "s_lshl_b32 s61, s33, 8", f"s_add_u32 s61, s61, {L_AO}", "v_add_u32 v11, s61, v11")
    c("final reducers: wave 0 of WGs with h < 4, s < 28; 8 output columns each (s45 >= 28: not a reducer)")
    PS = 8 * 16384
    if rs == 2: A("s_and_b32 s61, s32, 28", "s_lshr_b32 s62, s31, 1", "s_add_u32 s61, s61, s62", "s_bitcmp1_b32 s31, 0")
    elif rs == 1: A("s_and_b32 s61, s32, 28", "s_add_u32 s61, s61, s31", "s_sub_u32 s61, s61, 4", "s_cmp_lt_u32 s31, 4")
    else: A("s_and_b32 s61, s32, 28", "s_add_u32 s61, s61, s31", "s_cmp_ge_u32 s31, 4")
    A("s_cselect_b32 s61, 99, s61",
      "s_and_b32 s62, s32, 3", "s_lshl_b32 s63, s61, 2", "s_add_u32 s63, s63, s62", "s_lshl_b32 s46, s63, 4", "s_lshl_b32 s63, s63, 5",
      "s_cmp_lg_u32 s30, 0", "s_cselect_b32 s45, 99, s61",
      "s_cmp_ge_u32 s61, 14", f"s_cselect_b32 s62, {32*16384 - 1792}, 0", "s_add_u32 s63, s63, s62", f"s_add_u32 s44, s63, {X4 + side*8192}", f"s_add_u32 s40, s44, {PS}", f"s_add_u32 s41, s44, {2*PS}", f"s_add_u32 s42, s44, {3*PS}",
      "v_bfe_u32 v13, v2, 1, 2", "v_mul_u32_u24 v13, 1920, v13", "v_lshrrev_b32 v15, 3, v2", "v_lshl_add_u32 v13, v15, 14, v13", "v_lshl_add_u32 v13, v9, 4, v13",
      "s_mov_b32 s48, s24", "s_mov_b32 s49, s25", "s_mov_b32 s50, 1792", "s_mov_b32 s51, 0x20000",
      "s_lshl_b32 s58, s32, 2", "s_add_u32 s58, s58, s33", "v_mov_b32 v27, s56", "v_mov_b32 v28, 0", "v_mul_u32_u24 v29, 384, v2",
      f"s_mov_b32 s47, {XG + side*8192}", "s_mul_i32 s57, s31, 384", "s_add_u32 s57, s57, s47")
    W = 24; G = 16
    c("wait until the partner V-wave is near the end of its stream, then fetch the group's softmax stats")
    A("s_lshl_b32 s61, s33, 2", f"s_add_u32 s61, s61, {L_FL+32}", "v_mov_b32 v20, s61", f"s_mov_b32 s59, {SPIN*20}")
    lab("L_twait")
    A("s_sleep 4", "ds_read_b32 v21, v20", "s_waitcnt lgkmcnt(0)", "v_readfirstlane_b32 s61, v21",
      "s_sub_u32 s59, s59, 1", "s_cbranch_scc1 L_twait_done", "s_cmp_eq_u32 s61, 0", "s_cbranch_scc1 L_twait")
    lab("L_twait_done")
    a(f"s_mov_b32 s59, {SPIN}")
    lab("L_wchk")
    A("buffer_load_dwordx4 v[32:35], v8, s[52:55], s71 offen sc1",
      "s_waitcnt vmcnt(0)", "v_cmp_ne_u32 vcc, s56, v33", "v_cmp_ne_u32 s[60:61], s56, v35", "s_or_b64 vcc, vcc, s[60:61]",
      "s_sub_u32 s59, s59, 1", "s_cbranch_scc1 L_wok", "s_cbranch_vccnz L_wchk")
    lab("L_wok")
    c("LDS word for the V-waves: 1 = the group spans several XCDs")
    A(f"v_and_b32 v{W+1}, 15, v34", f"v_cmp_ne_u32 vcc, s68, v{W+1}")
    if force: a("s_mov_b64 vcc, -1")
    A("s_cmp_lg_u64 vcc, 0", "s_cselect_b32 s62, 1, 0", f"v_mov_b32 v{W+1}, {L_FL+28}", f"v_mov_b32 v{W+2}, s62", f"ds_write_b32 v{W+1}, v{W+2}")
    c("weight of producer p: exp2((M_p - M) * c) / sum_p exp2((M_p - M) * c) * L_p")
    a(f"v_mov_b32 v{W+1}, v32")
    allred("max", [W+1], ["row_ror:8", "row_ror:4", "row_ror:2"], [W+2], [16, 32])
    A(f"v_sub_f32 v{W}, v32, v{W+1}", f"v_mul_f32 v{W}, s69, v{W}", f"v_exp_f32 v{W}, v{W}"); nop(1)
    a(f"v_mul_f32 v{W+1}, v{W}, v34")
    allred("add", [W+1], ["row_ror:8", "row_ror:4", "row_ror:2"], [W+2], [16, 32])
    a(f"v_rcp_f32 v{W+1}, v{W+1}"); nop(1)
    A(f"v_mul_f32 v{W}, v{W}, v{W+1}", f"s_mov_b32 s59, {SPIN}")
    a("s_waitcnt lgkmcnt(0)")
    a("s_barrier")
    c("first poll once this WG's own partials can have reached L2")
    if ob: a("s_barrier                 ; B35")
    if odelay: a(f"s_sleep {odelay}")
    lab("L_opoll")
    A(f"buffer_load_dwordx4 v[{G}:{G+3}], v10, s[52:55], s70 offen sc1", "s_waitcnt vmcnt(0)")
    tagcheck([G], 20)
    A("v_cmp_ne_u32 vcc, 0, v20", "s_cbranch_vccnz L_oretry")
    lab("L_opoll_done")
    a("s_mov_b64 exec, -1")
    if not vflag: A("s_cmp_eq_u32 s58, 1", "s_cbranch_scc1 L_flag")
    lab("L_noflag")
    A(f"v_pk_mul_f32 v[{G}:{G+1}], v[{G}:{G+1}], v[{W}:{W+1}] op_sel_hi:[1,0]", f"v_pk_mul_f32 v[{G+2}:{G+3}], v[{G+2}:{G+3}], v[{W}:{W+1}] op_sel_hi:[1,0]")
    nop(1)
    redscat(G)
    A(f"v_cvt_pk_bf16_f32 v{G}, v{G}, v{G}", f"ds_write_b16 v11, v{G}", "s_waitcnt lgkmcnt(0)")
    a("s_barrier")
    A("s_cmp_ge_u32 s45, 28", "s_cbranch_scc1 L_fin", f"s_mov_b32 s59, {SPIN}", "s_mov_b64 exec, 0xff")
    c("reducers: wait for the group flags so that the partials are read once, after they were written")
    lab("L_gpoll")
    A("buffer_load_dword v30, v29, s[52:55], s47 offen sc1", "s_sub_u32 s59, s59, 1", "s_cbranch_scc1 L_gdone", "s_waitcnt vmcnt(0)",
      "v_cmp_ne_u32 vcc, s56, v30", "s_mov_b64 exec, vcc", "s_cbranch_vccnz L_gpoll")
    lab("L_gdone")
    A("s_mov_b64 exec, -1", f"s_mov_b32 s59, {SPIN}")
    c("the flag runs ahead of the slowest partial stores; a read that comes too early costs a whole extra round trip")
    if gdelay: a(f"s_sleep {gdelay}")
    lab("L_fpoll")
    for n in range(4): a(f"buffer_load_dwordx4 v[{32+4*n}:{35+4*n}], v13, s[52:55], s{(44, 40, 41, 42)[n]} offen sc1")
    for n in range(4):
        a(f"s_waitcnt vmcnt({3-n})")
        b = 32 + 4 * n
        for k in range(4):
            if n == 0 and k == 0: a(f"v_xor_b32 v20, s64, v{b}")
            else: a(f"v_bitop3_b32 v20, v{b+k}, s{64+k}, v20 bitop3:0xbe")
        if n == 1: A("v_pk_add_f32 v[48:49], v[32:33], v[36:37]", "v_pk_add_f32 v[50:51], v[34:35], v[38:39]")
        if n >= 2: A(f"v_pk_add_f32 v[48:49], v[48:49], v[{b}:{b+1}]", f"v_pk_add_f32 v[50:51], v[50:51], v[{b+2}:{b+3}]")
    A(f"v_and_b32 v20, {TM:#x}, v20", "v_cmp_ne_u32 vcc, 0, v20", "s_cbranch_vccnz L_fretry")
    lab("L_fpoll_done")
    redscat(48)
    A("v_cvt_pk_bf16_f32 v48, v48, v48", "buffer_store_short v48, v14, s[48:51], s46 offen")
    c("every WG has read the epoch by now: advance it")
    A("s_cmp_lg_u32 s46, 0", "s_cbranch_scc1 L_fin", "s_mov_b64 exec, 1", "buffer_store_dword v27, v28, s[52:55], 0 offen", "s_branch L_fin")
    lab("L_flag")
    A("s_mov_b64 exec, 1", "buffer_store_dword v27, v28, s[52:55], s57 offen sc1", "s_mov_b64 exec, -1", "s_branch L_noflag")
    lab("L_oretry")
    A("s_mov_b64 exec, vcc", "s_bcnt1_i32_b64 s61, vcc", f"s_cmp_le_u32 s61, {othr}", "s_cbranch_scc1 L_opoll_ns", f"s_sleep {osleep}")
    lab("L_opoll_ns")
    A("s_sub_u32 s59, s59, 1", "s_cbranch_scc0 L_opoll", "s_branch L_opoll_done")
    lab("L_fretry")
    A("s_sub_u32 s59, s59, 1", "s_cbranch_scc0 L_fpoll", "s_branch L_fpoll_done")

    c("================================ V-waves ================================")
    lab("L_vwave")
    a("s_setprio 3")
    c("pull the kernel's code into this XCD's L2")
    A("s_cmp_ge_u32 s32, 3", "s_cbranch_scc1 L_nopf", "s_getpc_b64 s[60:61]")
    lab("L_pc")
    A(f"s_sub_u32 s60, s60, L_pc-{KN}", "s_subb_u32 s61, s61, 0", "s_lshl_b32 s62, s32, 2", "s_add_u32 s62, s62, s33", "s_lshl_b32 s62, s62, 10",
      "v_lshl_add_u32 v8, v2, 4, s62", f"v_min_u32 v8, L_end-{KN}-12, v8", "global_load_dwordx4 v[252:255], v8, s[60:61]")
    lab("L_nopf")
    A(f"v_mov_b32 v5, {L_FL}", "v_mov_b32 v8, 0", "v_mov_b32 v9, 0", "v_mov_b32 v10, 0", "v_mov_b32 v11, 0",
      "ds_write_b128 v5, v[8:11]", "ds_write_b128 v5, v[8:11] offset:16", "ds_write_b128 v5, v[8:11] offset:32")
    c("q projection piece: column block s70 (64 columns), s69 units of 32 rows starting at row s71/2")
    A("v_lshrrev_b32 v6, 3, v2", "v_and_b32 v7, 7, v2", "v_lshlrev_b32 v12, 13, v6", "v_lshl_add_u32 v12, v7, 4, v12", "v_lshlrev_b32 v13, 1, v6")
    ne_tab = sum(v << (8 * i) for i, v in enumerate(nE))
    A("s_lshr_b32 s63, s31, 1", "s_lshl_b32 s60, s63, 5", "s_add_u32 s60, s60, s32", "s_sub_u32 s60, s60, 16",
      "s_mul_i32 s61, s60, 147", "s_lshr_b32 s61, s61, 10", "s_mul_i32 s62, s61, 7", "s_sub_u32 s62, s60, s62",
      "s_cmp_ge_u32 s62, 3", "s_addc_u32 s62, s62, 0", "s_lshl_b32 s61, s61, 3", "s_add_u32 s70, s61, s62",
      "s_lshl_b32 s63, s63, 3", f"s_mov_b32 s61, {ne_tab:#x}", "s_lshr_b32 s61, s61, s63", "s_and_b32 s69, s61, 0xff",
      "s_lshl_b32 s61, s32, 3", "s_add_u32 s61, s61, 3",
      "s_cmp_lt_i32 s60, 0", "s_cselect_b32 s70, s61, s70", f"s_cselect_b32 s69, {nE3}, s69",
      "s_sub_u32 s61, 14, s69", "s_bitcmp1_b32 s31, 0", "s_cselect_b32 s71, s69, 0", "s_cselect_b32 s69, s61, s69",
      "s_lshl_b32 s71, s71, 6", "s_lshl_b32 s61, s33, 4", "s_add_u32 s71, s71, s61")
    A("s_and_b32 s61, s70, 63", "s_lshl_b32 s61, s61, 7", "s_lshl_b32 s62, s71, 12", "s_add_u32 s61, s61, s62",
      "s_mov_b32 s50, 896", "s_mov_b32 s51, 0x20000", "s_mov_b32 s46, 3670016", "s_mov_b32 s47, 0x20000")
    a("s_waitcnt lgkmcnt(0)")
    A("s_load_dword s56, s[28:29], 0",
      "s_cmp_ge_u32 s70, 64", "s_cselect_b32 s44, s20, s10", "s_cselect_b32 s45, s21, s11", "s_cselect_b32 s48, s14, s4", "s_cselect_b32 s49, s15, s5")
    a("s_barrier                 ; B0")
    WQ = 96; XR = 24
    NU = max(max(nE), 14 - min(nE), nE3, 14 - nE3)
    for n in range(NU):
        A(f"s_cmp_le_u32 s69, {n}", "s_cbranch_scc1 L_wqdone",
          f"buffer_load_dwordx4 v[{WQ+4*n}:{WQ+4*n+3}], v12, s[44:47], s61 offen nt", f"buffer_load_ushort v{XR+n}, v13, s[48:51], s71 offen offset:{n*64}")
        if n < NU - 1: a(f"s_add_u32 s61, s61, {32*8192}")
    lab("L_wqdone")
    c("V lane layout: lane (g, c) reads key g, 16 B chunk c; Wo: rows 8g+t, 128 columns per wave (64 for wave 3)")
    A("s_mov_b32 s36, s8", "s_mov_b32 s37, s9", "s_mov_b32 s40, s18", "s_mov_b32 s41, s19", "s_mov_b32 s52, s28", "s_mov_b32 s53, s29")
    A("v_lshlrev_b32 v14, 9, v3", "v_lshl_add_u32 v14, v4, 4, v14")
    A("s_cmp_ge_u32 s32, 16", "s_cselect_b32 s44, s22, s12", "s_cselect_b32 s45, s23, s13")
    A("s_and_b32 s48, s32, 15", "s_lshl_b32 s48, s48, 5", "s_lshl_b32 s62, s31, 9", "s_add_u32 s48, s48, s62", "s_mul_i32 s48, s48, 896",
      "s_lshl_b32 s62, s33, 8", "s_add_u32 s48, s48, s62", "s_add_u32 s49, s48, 3584",
      "s_cmp_eq_u32 s33, 3", "s_cselect_b32 s62, 7, 15", "s_cselect_b32 s58, 0x00ff00ff, -1")
    A("v_mul_u32_u24 v15, 7168, v3", "v_lshl_add_u32 v15, v4, 4, v15", "v_cmp_lt_u32 vcc, s62, v4", "v_mov_b32 v8, 0x40000000"); nop(1)
    a("v_cndmask_b32 v15, v15, v8, vcc")
    a("s_waitcnt lgkmcnt(0)")
    maketag()
    AC = 16
    for k in range(8): a(f"v_mov_b32 v{AC+k}, 0")
    a("s_waitcnt vmcnt(0)")
    for n in range(NU):
        A(f"s_cmp_le_u32 s69, {n}", "s_cbranch_scc1 L_fmadone", f"v_lshlrev_b32 v{XR+n}, 16, v{XR+n}")
        for k in range(4):
            w = WQ + 4 * n + k
            A(f"v_lshlrev_b32 v8, 16, v{w}", f"v_and_b32 v9, 0xffff0000, v{w}", f"v_fmac_f32 v{AC+2*k}, v8, v{XR+n}", f"v_fmac_f32 v{AC+2*k+1}, v9, v{XR+n}")
    lab("L_fmadone")
    allred("add", [AC + k for k in range(8)], ["row_ror:8"], [], [])
    A("s_lshl_b32 s61, s33, 10", f"s_add_u32 s61, s61, {L_QP}", "v_lshlrev_b32 v8, 8, v3", "v_lshl_add_u32 v8, v7, 5, v8", "v_add_u32 v8, s61, v8")
    setexec(0x00ff00ff, 0x00ff00ff)
    A(f"ds_write_b128 v8, v[{AC}:{AC+3}]", f"ds_write_b128 v8, v[{AC+4}:{AC+7}] offset:16")
    A("s_mov_b64 exec, 1", "v_mov_b32 v9, 1", "s_waitcnt lgkmcnt(0)", "ds_add_rtn_u32 v10, v5, v9", "s_waitcnt lgkmcnt(0)",
      "s_mov_b64 exec, -1", "v_readfirstlane_b32 s61, v10", "s_cmp_lg_u32 s61, 3", "s_cbranch_scc1 L_vload")
    c("last V-wave: sum the 16 partial rows and publish this piece of q")
    A("v_lshlrev_b32 v8, 10, v3", "v_lshl_add_u32 v8, v4, 4, v8")
    for k in range(4): a(f"ds_read_b128 v[{16+4*k}:{19+4*k}], v8 offset:{L_QP + k*256}")
    a("s_waitcnt lgkmcnt(0)")
    for k in range(4): A(f"v_add_f32 v{16+k}, v{16+k}, v{20+k}", f"v_add_f32 v{24+k}, v{24+k}, v{28+k}")
    for k in range(4): a(f"v_add_f32 v{16+k}, v{16+k}, v{24+k}")
    allred("add", [16, 17, 18, 19], [], [20, 21, 22, 23], [16, 32])
    A("s_bfe_u32 s61, s70, 0x30003", "s_lshl_b32 s61, s61, 13", "s_lshr_b32 s62, s70, 6", "s_lshl_b32 s62, s62, 12", "s_add_u32 s61, s61, s62",
      "s_and_b32 s62, s70, 7", "s_lshl_b32 s62, s62, 8", "s_add_u32 s61, s61, s62", "s_and_b32 s62, s31, 1", "s_lshl_b32 s62, s62, 11", "s_add_u32 s61, s61, s62",
      f"s_add_u32 s61, s61, {X1}", "v_lshlrev_b32 v8, 4, v4", "v_mov_b32 v9, 0xff")
    pack(16, 16, 9)
    setexec(0xffff, 0)
    A("buffer_store_dwordx4 v[16:19], v8, s[52:55], s61 offen sc1", "s_mov_b64 exec, -1")
    lab("L_vload")
    a("s_setprio 1")
    VB = 96; WB = 16; PB_ = 48; OD = 76; AB = 68
    vl = []; reg = VB
    for br, npc, srd, so in ((0, 16, 36, 34), (1, 4, 40, 35)):
        for i in range(npc):
            for hf in range(2):
                pre = [f"s_xor_b32 s57, s{so}, {i << 13}"] if hf == 0 else []
                vl.append(pre + [f"buffer_load_dwordx4 v[{reg}:{reg+3}], v14, s[{srd}:{srd+3}], s57 offen offset:{hf*256} nt"]); reg += 4
    wo = [[f"buffer_load_dwordx4 v[{WB+4*t}:{WB+4*t+3}], v15, s[44:47], s{48 if t < 4 else 49} offen offset:{(t&3)*896} nt"] for t in range(8)]
    issue = vl[:2*wo_at] + wo[:wo_pre] + vl[2*wo_at:] + wo[wo_pre:]
    vpos = [k if k < 2*wo_at else k + wo_pre for k in range(40)]
    c("v8..v11: masks that place p at position lane&7 of the A row (head, i'); addresses for the tail")
    A("v_and_b32 v12, 1, v2", "v_lshlrev_b32 v12, 4, v12", "v_mov_b32 v13, 0xffff", "v_lshlrev_b32 v12, v12, v13", "v_bfe_u32 v13, v2, 1, 2")
    for j in range(4):
        a(f"v_cmp_eq_u32 vcc, {j}, v13"); nop(2); a(f"v_cndmask_b32 v{8+j}, 0, v12, vcc")
    A("s_lshl_b32 s61, s33, 12", "v_lshl_add_u32 v92, v2, 4, s61", "s_lshl_b32 s61, s33, 10", "v_lshl_add_u32 v93, v2, 4, s61",
      "s_lshr_b32 s61, s33, 1", "s_lshl_b32 s62, s61, 5", f"s_add_u32 s62, s62, {L_C}", "v_lshrrev_b32 v12, 5, v2", "v_lshl_add_u32 v94, v12, 4, s62",
      "s_lshl_b32 s61, s61, 4", "s_and_b32 s62, s33, 1", "s_lshl_b32 s62, s62, 2", "s_add_u32 s61, s61, s62",
      "v_lshrrev_b32 v13, 2, v4", "v_lshl_add_u32 v13, v12, 3, v13", "v_add_u32 v13, s61, v13",
      "v_add_u32 v1, s32, v13", "v_and_b32 v1, 31, v1", "v_lshlrev_b32 v1, 7, v1", "v_lshl_add_u32 v95, v13, 12, v1",
      "v_and_b32 v13, 3, v2", "v_lshl_add_u32 v95, v13, 5, v95", "v_and_b32 v13, 1, v3", "v_lshl_add_u32 v95, v13, 4, v95",
      "s_lshl_b32 s61, s31, 17", f"s_add_u32 s70, s61, {X3}", f"v_mov_b32 v5, {TM:#x}",
      "s_lshr_b32 s61, s32, 4", "s_lshl_b32 s61, s61, 7", "s_lshl_b32 s62, s31, 4", "s_add_u32 s61, s61, s62", "s_and_b32 s62, s32, 15", "s_add_u32 s61, s61, s62",
      "s_and_b32 s62, s61, 3", "s_lshr_b32 s61, s61, 2", "s_lshl_b32 s61, s61, 14", "s_mul_i32 s62, s62, 1920", "s_add_u32 s61, s61, s62",
      "s_lshl_b32 s62, s33, 9", "s_add_u32 s61, s61, s62", f"s_add_u32 s71, s61, {X4 + side*8192}",
      "v_lshlrev_b32 v6, 5, v4", "v_lshl_add_u32 v6, v13, 4, v6", "v_lshlrev_b32 v7, 4, v2")
    a("s_barrier                 ; B1")
    def pwait():
        c("p of the partner K-wave")
        A("s_lshl_b32 s61, s33, 2", f"s_add_u32 s61, s61, {L_FL+8}", "v_mov_b32 v12, s61", f"s_mov_b32 s59, {SPIN*100}")
        lab("L_pwait")
        A("ds_read_b32 v13, v12", "s_waitcnt lgkmcnt(0)", "v_readfirstlane_b32 s69, v13",
          "s_sub_u32 s59, s59, 1", "s_cbranch_scc1 L_pwait_done", "s_cmp_eq_u32 s69, 0", "s_cbranch_scc1 L_pwait")
        lab("L_pwait_done")
        A("v_bfe_u32 v12, v2, 3, 1", "v_lshl_add_u32 v12, v12, 2, v3", "s_lshl_b32 s61, s33, 10", f"s_add_u32 s61, s61, {L_P}",
          "v_lshl_add_u32 v13, v12, 6, s61", "v_lshl_add_u32 v12, v12, 4, s61")
        for k in range(4): a(f"ds_read_b128 v[{PB_+4*k}:{PB_+4*k+3}], v13 offset:{16*k}")
        A(f"ds_read_b128 v[{PB_+16}:{PB_+19}], v12 offset:512", "s_waitcnt lgkmcnt(0)")
    def pv(step, issued):
        br, b = (0, step) if step < 16 else (1, step - 16)
        n = b >> 1; t = b & 1
        p = PB_ + (t * 8 + n if br == 0 else 16 + t * 2 + n)
        ab = AB + (step & 1) * 4
        for j in range(4): a(f"v_and_b32 v{ab+j}, v{p}, v{8+j}")
        A(f"s_waitcnt vmcnt({issued - 1 - vpos[2*step+1]})", "s_nop 0")
        for hf in range(2):
            d = OD + (br * 2 + hf) * 4; r = VB + (2 * step + hf) * 4
            cc = "0" if b == 0 else f"v[{d}:{d+3}]"
            a(f"v_mfma_f32_16x16x32_bf16 v[{d}:{d+3}], v[{ab}:{ab+3}], v[{r}:{r+3}], {cc}")
        if step == 17:
            for k in range(2): a(f"ds_write_b128 v92, v[{OD+4*k}:{OD+4*k+3}] offset:{L_OP + k*1024}")
    ns = 0; havep = False
    for ni0, ins in enumerate(issue):
        NVc = NV2 if (NV2 and ni0 >= 48 - late) else NV
        if ni0 >= NVc: a(f"s_waitcnt vmcnt({NVc-1})")
        A(*ins); ni = ni0 + 1
        if ni == trig: A("s_lshl_b32 s61, s33, 2", f"s_add_u32 s61, s61, {L_FL+32}", "v_mov_b32 v12, s61", "ds_write_b32 v12, v12")
        if ni == 48: stamp(3)
        if ni == 2 * p0: pwait(); havep = True
        if havep and ns < 20 and vpos[2*ns+1] < ni - NVc:
            pv(ns, ni); ns += 1
    while ns < 20:
        pv(ns, 48); ns += 1
    nop(7)
    for k in range(2, 4): a(f"ds_write_b128 v92, v[{OD+4*k}:{OD+4*k+3}] offset:{L_OP + k*1024}")
    a("s_waitcnt lgkmcnt(0)")
    a("s_barrier                 ; B3")
    c("combine the 4 waves' partials (rescaled to the WG max) and publish X3")
    T = 96
    A(f"ds_read_b32 v13, v7 offset:{L_FL+28}", f"ds_read_b128 v[{T+16}:{T+19}], v94")
    for k in range(4): a(f"ds_read_b128 v[{T+4*k}:{T+4*k+3}], v93 offset:{L_OP + k*4096}")
    for k in range(4):
        a(f"s_waitcnt lgkmcnt({3-k})")
        if k == 0: a("v_readfirstlane_b32 s61, v13")
        if k == 1: a("s_cmp_eq_u32 s61, 0")
        cp = T + 16 + (k & 2); sel = k & 1
        for m in (0, 2):
            if k == 0: a(f"v_pk_mul_f32 v[{T+20+m}:{T+21+m}], v[{T+m}:{T+m+1}], v[{cp}:{cp+1}] op_sel:[0,{sel}] op_sel_hi:[1,{sel}]")
            else: a(f"v_pk_fma_f32 v[{T+20+m}:{T+21+m}], v[{T+4*k+m}:{T+4*k+m+1}], v[{cp}:{cp+1}], v[{T+20+m}:{T+21+m}] op_sel:[0,{sel},0] op_sel_hi:[1,{sel},1]")
    pack(T + 20, T + 20, 5)
    a("s_cbranch_scc0 L_x3slow")
    a(f"buffer_store_dwordx4 v[{T+20}:{T+23}], v95, s[52:55], s70 offen")
    lab("L_x3done")
    if vflag: A("s_lshl_b32 s63, s32, 2", "s_add_u32 s63, s63, s33", "s_mul_i32 s60, s31, 384", f"s_add_u32 s60, s60, {XG + side*8192}", "v_mov_b32 v12, s56")
    if ob == 1: A("s_waitcnt vmcnt(0)", "s_barrier                 ; B35")
    elif ob == 2: A("s_waitcnt vmcnt(1)", "s_barrier                 ; B35")
    else: a("s_waitcnt vmcnt(1)")
    a("s_barrier                 ; B4")
    c("out projection of this WG's 32 rows, publish X4")
    AO = T + 32
    for t in range(8): a(f"ds_read_b128 v[{AO+4*t}:{AO+4*t+3}], v7 offset:{L_AO + t*1024}")
    for t in range(8):
        a(f"s_waitcnt lgkmcnt({7-t})")
        cc = "0" if t == 0 else f"v[{T}:{T+3}]"
        a(f"v_mfma_f32_16x16x32_bf16 v[{T}:{T+3}], v[{AO+4*t}:{AO+4*t+3}], v[{WB+4*t}:{WB+4*t+3}], {cc}")
    A("s_mov_b32 exec_lo, s58", "s_mov_b32 exec_hi, 0")
    nop(6)
    pack(T + 4, T, 5)
    a(f"buffer_store_dwordx4 v[{T+4}:{T+7}], v6, s[52:55], s71 offen sc1")
    if vflag:
        A("s_cmp_lg_u32 s63, 3", "s_cbranch_scc1 L_fin", "s_mov_b64 exec, 1", "buffer_store_dword v12, v7, s[52:55], s60 offen sc1")
    lab("L_fin")
    if mini:
        A("s_cmp_lg_u32 s30, 0", "s_cbranch_scc1 L_end", "s_mov_b64 exec, -1")
        stamp(9)
        A("s_waitcnt lgkmcnt(0)", "s_lshl_b32 s61, s2, 9", f"s_add_u32 s61, s61, {STAMP}", "v_mov_b32 v32, s72", "v_mov_b32 v33, s90", "v_mov_b32 v1, 0", "s_mov_b64 exec, 1",
          "buffer_store_dwordx2 v[32:33], v1, s[52:55], s61 offen")
    elif stamps:
        a("s_mov_b64 exec, -1")
        stamp(9)
        a("s_waitcnt lgkmcnt(0)")
        A("s_lshl_b32 s61, s2, 3", "s_add_u32 s61, s61, s30", "s_lshl_b32 s61, s61, 6", f"s_add_u32 s61, s61, {STAMP}")
        for k in range(10): a(f"v_mov_b32 v{32+k}, s{72+2*k}")
        A("s_getreg_b32 s62, hwreg(HW_REG_XCC_ID)", "v_mov_b32 v42, s62", "v_mov_b32 v43, s59", "v_mov_b32 v1, 0", "s_mov_b64 exec, 1")
        for k in range(3): a(f"buffer_store_dwordx4 v[{32+4*k}:{35+4*k}], v1, s[52:55], s61 offen offset:{16*k}")
    lab("L_end"); a("s_endpgm")
    lab("L_x3slow")
    A(f"buffer_store_dwordx4 v[{T+20}:{T+23}], v95, s[52:55], s70 offen sc1", "s_branch L_x3done")
    L.append('.section .rodata,"a"'); L.append(".p2align 6"); L.append(f".amdhsa_kernel {KN}")
    for s in ("next_free_vgpr 256", "next_free_sgpr 96", "accum_offset 256", "group_segment_fixed_size 0", "kernarg_size 104", "user_sgpr_count 2", "user_sgpr_kernarg_segment_ptr 1", "system_sgpr_workgroup_id_x 1"):
        L.append("  .amdhsa_" + s)
    L.append(".end_amdhsa_kernel")
    open(name, "w").write("\n".join(L) + "\n")

if __name__ == "__main__":
    gen("Z.s"); gen("Z_rm.s", remap=True)
```

```python
import sys, math, struct
KN = "concat_heads__gqa_block_cached__sliding_block_cached__decode_kernel"
HDR = open("concat_heads__gqa_block_cached__sliding_block_cached__decode.s.ref").read().split("; Override")[0]

X2 = 0x4000
X1 = 0x10000
X3 = 0x40000
X4 = 0x200000
XG = 0x300000
STAMP = 0x8000000
L_OP = 0; L_QP = 0; L_P = 0x4000; L_Q = 0x5000; L_C = 0x5800; L_FL = 0x5840; L_ML = 0x5900; L_AO = 0x6000
LDS_BYTES = 0x8000
SPIN = 20000
DPP = "row_mask:0xf bank_mask:0xf"
TB = 10; TM = (1 << TB) - 1

DOC = """; ---------------------------------------------------------------------------------------------
; ---------------------------------------------------------------------------------------------"""

def gen(name, stamps=False, NK=6, NV=6, nE=(9, 9, 9, 9), nE3=7, p0=12, wo_at=16, wo_pre=1, trig=30, qsleep=4, osleep=4, othr=8,
        odelay=11, gdelay=5, remap=False, force=False, side=0, ob=0, vflag=False, NV2=0, late=8, rs=0, mini=False, tlb=0, eb0=False, pvs=1, qe=0, skew=0, diag=False):
    L = []
    def a(s): L.append("  " + s)
    def A(*ss):
        for s in ss: a(s)
    def c(s): L.append("  ; " + s)
    def lab(s): L.append(s + ":")
    def nop(n): a(f"s_nop {n-1}")
    def stamp(k):
        if stamps and k in (0, 3, 9): a(f"s_memrealtime s[{72+2*k}:{73+2*k}]")
    def setexec(lo, hi): A(f"s_mov_b32 exec_lo, {lo:#x}", f"s_mov_b32 exec_hi, {hi:#x}")
    def allred(op, regs, dpps, tmp, swaps):
        for r in dpps:
            nop(2)
            for x in regs: a(f"v_{op}_f32_dpp v{x}, v{x}, v{x} {r} {DPP}")
        for sw in swaps:
            for x, t in zip(regs, tmp): a(f"v_mov_b32 v{t}, v{x}")
            nop(2)
            for x, t in zip(regs, tmp): a(f"v_permlane{sw}_swap_b32 v{x}, v{t}")
            nop(1)
            for x, t in zip(regs, tmp): a(f"v_{op}_f32 v{x}, v{x}, v{t}")
    def maketag():
        c("s56 = launch tag (LCG step of the epoch word), s64..s67 = 10-bit per-dword tags")
        A("s_mul_i32 s56, s56, 0x9E3779B1", "s_add_u32 s56, s56, 0x7F4A7C15", "s_mul_i32 s67, s56, 0x85EBCA6B",
          f"s_and_b32 s64, s56, {TM:#x}", f"s_bfe_u32 s65, s56, {(TB << 16) | 11:#x}", f"s_lshr_b32 s66, s56, {32-TB}", f"s_lshr_b32 s67, s67, {32-TB}")
    def tagcheck(bases, t, m=TM):
        first = True
        for b in bases:
            for k in range(4):
                if first: a(f"v_xor_b32 v{t}, s{64+k}, v{b+k}"); first = False
                else: a(f"v_bitop3_b32 v{t}, v{b+k}, s{64+k}, v{t} bitop3:0xbe")
        a(f"v_and_b32 v{t}, {m:#x}, v{t}")
    def pack(dst, src, m):
        for k in range(4): a(f"v_bfi_b32 v{dst+k}, v{m}, s{64+k}, v{src+k}")
    def redscat(g):
        A(f"v_permlane32_swap_b32 v{g}, v{g+1}", f"v_permlane32_swap_b32 v{g+2}, v{g+3}", f"v_add_f32 v{g}, v{g}, v{g+1}", f"v_add_f32 v{g+2}, v{g+2}, v{g+3}"); nop(2)
        a(f"v_permlane16_swap_b32 v{g}, v{g+2}"); nop(1)
        a(f"v_add_f32 v{g}, v{g}, v{g+2}")
        allred("add", [g], ["row_ror:8", "row_ror:4", "row_ror:2"], [], [])
    X1Q, X2Q = "quad_perm:[1,0,3,2]", "quad_perm:[2,3,0,1]"

    L.append(HDR.rstrip())
    L.append(f"; @launch grid=(256,1,1) block=(512,1,1) lds={LDS_BYTES}")
    L.append(DOC)
    L.append('.amdgcn_target "amdgcn-amd-amdhsa--gfx950"')
    L.append(".text"); L.append(f".globl {KN}"); L.append(".p2align 8"); L.append(f".type {KN},@function"); lab(KN)
    A("s_cmp_ge_u32 s2, 256", "s_cbranch_scc1 L_end")
    A("s_load_dwordx16 s[4:19], s[0:1], 0", "s_load_dwordx8 s[20:27], s[0:1], 64", "s_load_dwordx2 s[28:29], s[0:1], 96")
    if remap: A("s_and_b32 s3, s2, 31", "s_lshl_b32 s3, s3, 3", "s_lshr_b32 s2, s2, 5", "s_or_b32 s2, s2, s3")
    stamp(0)
    if diag: a("s_memrealtime s[72:73]")
    if skew:
        A("s_bitcmp0_b32 s2, 1", "s_cbranch_scc1 L_nsk", f"s_sleep {skew}")
        lab("L_nsk")
    c("v2 = lane, v3 = lane>>4, v4 = lane&15; s30 = wave, s31 = h, s32 = s, s33 = wave&3")
    A("v_lshrrev_b32 v1, 6, v0", "v_and_b32 v2, 63, v0", "s_and_b32 s31, s2, 7", "v_readfirstlane_b32 s30, v1", "s_lshr_b32 s32, s2, 3",
      "v_lshrrev_b32 v3, 4, v2", "v_and_b32 v4, 15, v2", "s_and_b32 s33, s30, 3")
    c("s34/s35 = K/V byte offsets of branch A/B; 2 KB pieces interleaved over the 4 waves, order xor-scrambled per WG")
    A("s_lshl_b32 s57, s31, 22", "s_lshl_b32 s58, s33, 11", "s_add_u32 s57, s57, s58", "s_mul_i32 s58, s2, 0x9e3779b1", "s_lshr_b32 s58, s58, 7",
      "s_lshl_b32 s35, s32, 15", "s_add_u32 s35, s35, s57", "s_and_b32 s59, s58, 0x6000", "s_add_u32 s35, s35, s59", "s_add_u32 s35, s35, 0x300000",
      "s_lshl_b32 s34, s32, 17", "s_add_u32 s34, s34, s57", "s_and_b32 s59, s58, 0x1e000", "s_add_u32 s34, s34, s59")
    A("s_mov_b32 s38, 0x2000000", "s_mov_b32 s39, 0x20000", "s_mov_b32 s42, 0x2000000", "s_mov_b32 s43, 0x20000",
      "s_mov_b32 s54, 0x10000000", "s_mov_b32 s55, 0x20000")
    A("s_cmp_ge_u32 s30, 4", "s_cbranch_scc1 L_vwave")

    c("================================ K-waves ================================")
    KB = 96
    a("s_setprio 1")
    c("K lane layout: lane (g, key4, sub) reads key4*512 + g*64 + sub*16 (+256 for the second half row)")
    A("v_bfe_u32 v5, v2, 2, 2", "v_and_b32 v6, 3, v2", "v_lshlrev_b32 v7, 6, v3", "v_lshl_add_u32 v7, v6, 4, v7", "v_lshl_add_u32 v7, v5, 9, v7")
    a("s_waitcnt lgkmcnt(0)")
    A("s_mov_b32 s36, s6", "s_mov_b32 s37, s7", "s_mov_b32 s40, s16", "s_mov_b32 s41, s17")
    reg = KB; cnt = 0
    for br, npc, srd, so in ((0, 16, 36, 34), (1, 4, 40, 35)):
        for i in range(npc):
            a(f"s_xor_b32 s57, s{so}, {i << 13}")
            for j in range(2):
                if cnt >= NK: a(f"s_waitcnt vmcnt({NK-1})")
                a(f"buffer_load_dwordx4 v[{reg}:{reg+3}], v7, s[{srd}:{srd+3}], s57 offen offset:{j*256} nt"); reg += 4; cnt += 1
            if cnt == 4:
                c("epoch word; bring this WG's X3 lines into L2 (value unused)")
                A("s_load_dword s56, s[28:29], 0", "s_mov_b32 s52, s28", "s_mov_b32 s53, s29",
                  "s_lshl_b32 s61, s31, 5", "s_add_u32 s61, s61, s32", "s_lshl_b32 s61, s61, 12", "s_lshl_b32 s62, s33, 10", "s_add_u32 s61, s61, s62", f"s_add_u32 s61, s61, {X3}",
                  "v_lshlrev_b32 v8, 4, v2", "buffer_load_dwordx4 v[12:15], v8, s[52:55], s61 offen sc1",
                  *(["s_mov_b64 exec, 1", "buffer_load_dword v9, v8, s[40:43], s35 offen nt", "s_mov_b64 exec, -1"] if tlb & 1 else []), "s_barrier")
    a("s_barrier")
    c("gather q (wave = branch*2+head): add the two partials, round to bf16, share through LDS")
    A("v_bfe_u32 v8, v2, 2, 1", "v_lshlrev_b32 v8, 9, v8", "v_lshl_add_u32 v8, v3, 6, v8", "v_lshl_add_u32 v8, v6, 4, v8", f"v_mov_b32 v9, {L_FL+24}")
    A("v_lshlrev_b32 v12, 4, v2", "s_lshl_b32 s58, s31, 13", "s_lshr_b32 s61, s33, 1", "s_lshl_b32 s61, s61, 12", "s_add_u32 s58, s58, s61",
      "s_and_b32 s61, s33, 1", "s_lshl_b32 s61, s61, 10", "s_add_u32 s58, s58, s61", f"s_add_u32 s58, s58, {X1}",
      "s_lshl_b32 s61, s33, 9", f"s_add_u32 s61, s61, {L_Q}", "v_lshl_add_u32 v13, v2, 3, s61", "v_mov_b32 v14, 1",
      "s_getreg_b32 s68, hwreg(HW_REG_XCC_ID, 0, 4)")
    a("s_waitcnt lgkmcnt(0)")
    maketag()
    A(f"s_mov_b32 s59, {SPIN}", "s_branch L_qpoll1")
    lab("L_qpoll")
    a(f"s_sleep {qsleep}")
    lab("L_qpoll1")
    A("buffer_load_dwordx4 v[16:19], v12, s[52:55], s58 offen sc1", "buffer_load_dwordx4 v[20:23], v12, s[52:55], s58 offen offset:2048 sc1", "s_waitcnt vmcnt(0)")
    tagcheck([16, 20], 10, 0xff)
    A("v_cmp_ne_u32 vcc, 0, v10", "s_sub_u32 s59, s59, 1", "s_cbranch_scc1 L_qpoll_done", "s_cbranch_vccnz L_qpoll")
    lab("L_qpoll_done")
    for k in range(8): a(f"v_and_b32 v{16+k}, 0xffffff00, v{16+k}")
    for k in range(4): a(f"v_add_f32 v{16+k}, v{16+k}, v{20+k}")
    A("v_cvt_pk_bf16_f32 v16, v16, v17", "v_cvt_pk_bf16_f32 v17, v18, v19", "ds_write_b64 v13, v[16:17]")
    A("s_mov_b64 exec, 1", "s_waitcnt lgkmcnt(0)", "ds_add_u32 v9, v14", "s_mov_b64 exec, -1", f"s_mov_b32 s59, {SPIN*100}")
    lab("L_qwait")
    A("ds_read_b32 v10, v9", "s_waitcnt lgkmcnt(0)", "v_readfirstlane_b32 s61, v10",
      "s_sub_u32 s59, s59, 1", "s_cbranch_scc1 L_qwait_done", "s_cmp_lt_u32 s61, 4", "s_cbranch_scc1 L_qwait")
    lab("L_qwait_done")
    QG = 16; FB = 48; DB = 8; SB = 80
    c("A operands: row (t, head, sub') = 8 q values; rows of the other key block t are zero")
    for br in range(2):
        for j in range(2):
            r = QG + (br * 2 + j) * 4
            a(f"ds_read_b128 v[{r}:{r+3}], v8 offset:{L_Q + br*1024 + j*256}")
    A("s_mov_b32 s60, 0x00ff00ff", "s_mov_b32 s61, 0x00ff00ff", "s_mov_b32 s62, 0xff00ff00", "s_mov_b32 s63, 0xff00ff00")
    a("s_waitcnt lgkmcnt(0)")
    for br in range(2):
        for j in range(2):
            for t in range(2):
                for k in range(4):
                    a(f"v_cndmask_b32 v{FB + ((br*2+j)*2+t)*4 + k}, 0, v{QG + (br*2+j)*4 + k}, s[{60+2*t}:{61+2*t}]")
    nop(2)
    c("QK^T: 8 keys per accumulator; the score is the sum of the diagonal sub == sub' inside each quad")
    reg = KB
    for br, ngrp in ((0, 8), (1, 2)):
        for n in range(ngrp):
            d = DB + (br * 8 + n) * 4
            first = True
            for t in range(2):
                for j in range(2):
                    f = FB + ((br * 2 + j) * 2 + t) * 4
                    cc = "0" if first else f"v[{d}:{d+3}]"
                    a(f"v_mfma_f32_16x16x32_bf16 v[{d}:{d+3}], v[{f}:{f+3}], v[{reg}:{reg+3}], {cc}")
                    first = False; reg += 4
    nop(8)
    for k in range(4):
        for n in range(10):
            d = DB + n * 4
            if k == 0: a(f"v_mov_b32_dpp v{SB+n}, v{d} quad_perm:[0,0,0,0] {DPP}")
            else: a(f"v_add_f32_dpp v{SB+n}, v{d+k}, v{SB+n} quad_perm:[{k},{k},{k},{k}] {DPP}")
    c("scores are bf16 in the reference; wave-local max (v8: A, v10: B), p = exp2((s - max) * log2e/16)")
    for n in range(10): a(f"v_cvt_pk_bf16_f32 v{SB+n}, v{SB+n}, v{SB+n}")
    for n in range(10): a(f"v_and_b32 v{SB+n}, 0xffff0000, v{SB+n}")
    A(f"v_max3_f32 v8, v{SB}, v{SB+1}, v{SB+2}", f"v_max_f32 v10, v{SB+8}, v{SB+9}",
      f"v_max3_f32 v8, v8, v{SB+3}, v{SB+4}", f"v_max3_f32 v8, v8, v{SB+5}, v{SB+6}", f"v_max_f32 v8, v8, v{SB+7}")
    allred("max", [8, 10], ["row_ror:4", "row_ror:8"], [12, 13], [32])
    cb = struct.unpack("<I", struct.pack("<f", math.log2(math.e) / 16.0))[0]
    a(f"s_mov_b32 s69, {cb:#x}")
    for n in range(10): a(f"v_sub_f32 v{SB+n}, v{SB+n}, v{8 if n < 8 else 10}")
    for n in range(10): a(f"v_mul_f32 v{SB+n}, s69, v{SB+n}")
    for n in range(10): a(f"v_exp_f32 v{SB+n}, v{SB+n}")
    nop(1)
    for n in range(10): a(f"v_cvt_pk_bf16_f32 v{16+n}, v{SB+n}, v{SB+n}")
    A("v_bfe_u32 v26, v2, 2, 3", "v_lshrrev_b32 v27, 5, v2", "s_lshl_b32 s61, s33, 10", f"s_add_u32 s61, s61, {L_P}",
      "v_lshlrev_b32 v28, 2, v27", "v_lshl_add_u32 v28, v26, 3, v28", "v_lshl_add_u32 v29, v28, 3, s61", "v_lshl_add_u32 v30, v28, 1, s61")
    setexec(0x11111111, 0x11111111)
    A("ds_write_b128 v29, v[16:19]", "ds_write_b128 v29, v[20:23] offset:16", "ds_write_b64 v30, v[24:25] offset:512")
    a("s_mov_b64 exec, -1")
    A(f"v_add_f32 v9, v{SB}, v{SB+1}", f"v_add_f32 v11, v{SB+8}, v{SB+9}")
    for n in range(2, 8): a(f"v_add_f32 v9, v9, v{SB+n}")
    a("s_waitcnt lgkmcnt(0)")
    A("s_lshl_b32 s61, s33, 2", f"s_add_u32 s61, s61, {L_FL+8}", "v_mov_b32 v31, s61", "v_mov_b32 v32, 1", "ds_write_b32 v31, v32")
    allred("add", [9, 11], ["row_ror:4", "row_ror:8"], [12, 13], [32])
    A("v_and_b32 v20, 16, v2", "s_lshl_b32 s61, s33, 3", f"s_add_u32 s61, s61, {L_ML}", "v_lshl_add_u32 v20, v20, 1, s61")
    setexec(0x00010001, 0)
    A("ds_write_b64 v20, v[8:9]", "ds_write_b64 v20, v[10:11] offset:64")
    A("s_mov_b64 exec, 1", f"v_mov_b32 v21, {L_FL+4}", "s_waitcnt lgkmcnt(0)", "ds_add_rtn_u32 v22, v21, v32", "s_waitcnt lgkmcnt(0)",
      "s_mov_b64 exec, -1", "v_readfirstlane_b32 s61, v22")
    A("s_cmp_lg_u32 s61, 3", "s_cbranch_scc1 L_kjoin")
    c("last K-wave: WG max / sum, per-wave rescale factors -> LDS, publish X2")
    A("v_lshlrev_b32 v20, 3, v4", f"ds_read_b64 v[8:9], v20 offset:{L_ML}", "s_waitcnt lgkmcnt(0)", "v_mov_b32 v10, v8")
    allred("max", [10], [X1Q, X2Q], [], [])
    A("v_sub_f32 v8, v8, v10", "v_mul_f32 v8, s69, v8", "v_exp_f32 v8, v8", "v_lshlrev_b32 v20, 2, v4", "v_mul_f32 v11, v8, v9", f"ds_write_b32 v20, v8 offset:{L_C}")
    allred("add", [11], [X1Q, X2Q], [], [])
    A("v_mov_b32 v16, v10", "v_mov_b32 v17, s56", "v_and_b32 v18, -16, v11", "v_or_b32 v18, s68, v18", "v_mov_b32 v19, s56")
    A("s_lshl_b32 s57, s31, 11", "s_lshl_b32 s61, s32, 4", "s_add_u32 s61, s61, s57", f"s_add_u32 s61, s61, {X2}")
    A("v_and_b32 v21, 12, v2", "v_lshlrev_b32 v21, 7, v21")
    setexec(0x1111, 0)
    a("buffer_store_dwordx4 v[16:19], v21, s[52:55], s61 offen sc1")
    a("s_mov_b64 exec, -1")
    nop(1)
    lab("L_kjoin")
    if diag:
        A("s_cmp_ge_u32 s2, 8", "s_cbranch_scc1 L_nodiag", "s_cmp_lg_u32 s30, 0", "s_cbranch_scc1 L_nodiag", "s_lshl_b32 s61, s2, 2", "v_mov_b32 v20, s61", "v_mov_b32 v21, s68", "s_and_b32 s72, s72, 0xffff", "v_mov_b32 v22, s72",
          "s_mov_b64 exec, 1", "global_store_dword v20, v21, s[26:27]", "global_store_dword v20, v22, s[26:27] offset:32", "s_mov_b64 exec, -1")
        lab("L_nodiag")
    c("zero this wave's quarter of the out-projection A image; addresses for the tail")
    A("v_mov_b32 v16, 0", "v_mov_b32 v17, 0", "v_mov_b32 v18, 0", "v_mov_b32 v19, 0", "s_lshl_b32 s61, s33, 11", "v_lshl_add_u32 v20, v2, 4, s61",
      f"ds_write_b128 v20, v[16:19] offset:{L_AO}", f"ds_write_b128 v20, v[16:19] offset:{L_AO+1024}")
    A("s_lshl_b32 s61, s31, 5", "s_add_u32 s61, s61, s32", "s_lshl_b32 s61, s61, 12", "s_lshl_b32 s62, s33, 5", "s_add_u32 s61, s61, s62", f"s_add_u32 s70, s61, {X3}",
      "v_lshrrev_b32 v8, 1, v2", "v_and_b32 v9, 1, v2", "v_lshlrev_b32 v10, 7, v8", "v_lshl_add_u32 v10, v9, 4, v10",
      "v_subrev_u32 v8, s32, v8", "v_and_b32 v8, 31, v8", "v_lshlrev_b32 v8, 4, v8",
      "s_lshl_b32 s61, s31, 11", "s_lshr_b32 s62, s32, 3", "s_lshl_b32 s62, s62, 9", "s_add_u32 s61, s61, s62", f"s_add_u32 s71, s61, {X2}")
    A("v_lshrrev_b32 v11, 5, v2", "v_bfe_u32 v12, v2, 4, 1", "v_lshl_add_u32 v11, v12, 1, v11", "v_lshl_add_u32 v11, v9, 2, v11", "v_lshlrev_b32 v14, 1, v11", "v_lshlrev_b32 v11, 10, v11",
      "v_bfe_u32 v12, v2, 1, 3", "v_lshl_add_u32 v14, v12, 21, v14", "v_mul_u32_u24 v12, 18, v12", "v_add_u32 v11, v11, v12", "s_lshl_b32 s61, s33, 8", f"s_add_u32 s61, s61, {L_AO}", "v_add_u32 v11, s61, v11")
    c("final reducers: wave 0 of WGs with h < 4, s < 28; 8 output columns each (s45 >= 28: not a reducer)")
    PS = 8 * 16384
    if rs == 2: A("s_and_b32 s61, s32, 28", "s_lshr_b32 s62, s31, 1", "s_add_u32 s61, s61, s62", "s_bitcmp1_b32 s31, 0")
    elif rs == 1: A("s_and_b32 s61, s32, 28", "s_add_u32 s61, s61, s31", "s_sub_u32 s61, s61, 4", "s_cmp_lt_u32 s31, 4")
    else: A("s_and_b32 s61, s32, 28", "s_add_u32 s61, s61, s31", "s_cmp_ge_u32 s31, 4")
    A("s_cselect_b32 s61, 99, s61",
      "s_and_b32 s62, s32, 3", "s_lshl_b32 s63, s61, 2", "s_add_u32 s63, s63, s62", "s_lshl_b32 s46, s63, 4", "s_lshl_b32 s63, s63, 5",
      "s_cmp_lg_u32 s30, 0", "s_cselect_b32 s45, 99, s61",
      "s_cmp_ge_u32 s61, 14", f"s_cselect_b32 s62, {32*16384 - 1792}, 0", "s_add_u32 s63, s63, s62", f"s_add_u32 s44, s63, {X4 + side*8192}", f"s_add_u32 s40, s44, {PS}", f"s_add_u32 s41, s44, {2*PS}", f"s_add_u32 s42, s44, {3*PS}",
      "v_bfe_u32 v13, v2, 1, 2", "v_mul_u32_u24 v13, 1920, v13", "v_lshrrev_b32 v15, 3, v2", "v_lshl_add_u32 v13, v15, 14, v13", "v_lshl_add_u32 v13, v9, 4, v13",
      "s_mov_b32 s48, s24", "s_mov_b32 s49, s25", "s_mov_b32 s50, 1792", "s_mov_b32 s51, 0x20000",
      "s_lshl_b32 s58, s32, 2", "s_add_u32 s58, s58, s33", "v_mov_b32 v27, s56", f"v_mov_b32 v31, {TM:#x}", "v_mov_b32 v28, 0", "v_mul_u32_u24 v29, 384, v2",
      f"s_mov_b32 s47, {XG + side*8192}", "s_mul_i32 s57, s31, 384", "s_add_u32 s57, s57, s47")
    W = 24; G = 16
    c("wait until the partner V-wave is near the end of its stream, then fetch the group's softmax stats")
    A("s_lshl_b32 s61, s33, 2", f"s_add_u32 s61, s61, {L_FL+32}", "v_mov_b32 v20, s61", f"s_mov_b32 s59, {SPIN*20}")
    lab("L_twait")
    A("s_sleep 4", "ds_read_b32 v21, v20", "s_waitcnt lgkmcnt(0)", "v_readfirstlane_b32 s61, v21",
      "s_sub_u32 s59, s59, 1", "s_cbranch_scc1 L_twait_done", "s_cmp_eq_u32 s61, 0", "s_cbranch_scc1 L_twait")
    lab("L_twait_done")
    a(f"s_mov_b32 s59, {SPIN}")
    lab("L_wchk")
    A("buffer_load_dwordx4 v[32:35], v8, s[52:55], s71 offen sc1",
      "s_waitcnt vmcnt(0)", "v_cmp_ne_u32 vcc, s56, v33", "v_cmp_ne_u32 s[60:61], s56, v35", "s_or_b64 vcc, vcc, s[60:61]",
      "s_sub_u32 s59, s59, 1", "s_cbranch_scc1 L_wok", "s_cbranch_vccnz L_wchk")
    lab("L_wok")
    c("LDS word for the V-waves: 1 = the group spans several XCDs")
    A(f"v_and_b32 v{W+1}, 15, v34", f"v_cmp_ne_u32 vcc, s68, v{W+1}", "v_and_b32 v34, -16, v34")
    if force: a("s_mov_b64 vcc, -1")
    A("s_cmp_lg_u64 vcc, 0", "s_cselect_b32 s62, 1, 0", f"v_mov_b32 v{W+1}, {L_FL+28}", f"v_mov_b32 v{W+2}, s62", f"ds_write_b32 v{W+1}, v{W+2}")
    c("weight of producer p: exp2((M_p - M) * c) / sum_p exp2((M_p - M) * c) * L_p")
    a(f"v_mov_b32 v{W+1}, v32")
    allred("max", [W+1], ["row_ror:8", "row_ror:4", "row_ror:2"], [W+2], [16, 32])
    A(f"v_sub_f32 v{W}, v32, v{W+1}", f"v_mul_f32 v{W}, s69, v{W}", f"v_exp_f32 v{W}, v{W}"); nop(1)
    a(f"v_mul_f32 v{W+1}, v{W}, v34")
    allred("add", [W+1], ["row_ror:8", "row_ror:4", "row_ror:2"], [W+2], [16, 32])
    a(f"v_rcp_f32 v{W+1}, v{W+1}"); nop(1)
    A(f"v_mul_f32 v{W}, v{W}, v{W+1}", f"s_mov_b32 s59, {SPIN}")
    a("s_waitcnt lgkmcnt(0)")
    a("s_barrier")
    c("first poll once this WG's own partials can have reached L2")
    if ob: a("s_barrier                 ; B35")
    if odelay: a(f"s_sleep {odelay}")
    lab("L_opoll")
    A(f"buffer_load_dwordx4 v[{G}:{G+3}], v10, s[52:55], s70 offen sc1", "s_waitcnt vmcnt(0)")
    c("xor clears the tag bits of valid data, so results do not depend on the tag")
    for k in range(4): a(f"v_xor_b32 v{G+k}, s{64+k}, v{G+k}")
    A(f"v_or3_b32 v20, v{G}, v{G+1}, v{G+2}", f"v_bitop3_b32 v20, v20, v{G+3}, v31 bitop3:0xa8")
    A("v_cmp_ne_u32 vcc, 0, v20", "s_cbranch_vccnz L_oretry")
    lab("L_opoll_done")
    a("s_mov_b64 exec, -1")
    if not vflag: A("s_cmp_eq_u32 s58, 1", "s_cbranch_scc1 L_flag")
    lab("L_noflag")
    A(f"v_pk_mul_f32 v[{G}:{G+1}], v[{G}:{G+1}], v[{W}:{W+1}] op_sel_hi:[1,0]", f"v_pk_mul_f32 v[{G+2}:{G+3}], v[{G+2}:{G+3}], v[{W}:{W+1}] op_sel_hi:[1,0]")
    nop(1)
    redscat(G)
    A(f"v_cvt_pk_bf16_f32 v{G}, v{G}, v{G}", f"ds_write_b16 v11, v{G}", "s_waitcnt lgkmcnt(0)")
    a("s_barrier")
    A("s_cmp_ge_u32 s45, 28", "s_cbranch_scc1 L_fin", f"s_mov_b32 s59, {SPIN}", "s_mov_b64 exec, 0xff")
    c("reducers: wait for the group flags so that the partials are read once, after they were written")
    lab("L_gpoll")
    A("buffer_load_dword v30, v29, s[52:55], s47 offen sc1", "s_sub_u32 s59, s59, 1", "s_cbranch_scc1 L_gdone", "s_waitcnt vmcnt(0)",
      "v_cmp_ne_u32 vcc, s56, v30", "s_mov_b64 exec, vcc", "s_cbranch_vccnz L_gpoll")
    lab("L_gdone")
    A("s_mov_b64 exec, -1", f"s_mov_b32 s59, {SPIN}")
    c("the flag runs ahead of the slowest partial stores; a read that comes too early costs a whole extra round trip")
    if gdelay: a(f"s_sleep {gdelay}")
    lab("L_fpoll")
    for n in range(4): a(f"buffer_load_dwordx4 v[{32+4*n}:{35+4*n}], v13, s[52:55], s{(44, 40, 41, 42)[n]} offen sc1")
    for n in range(4):
        a(f"s_waitcnt vmcnt({3-n})")
        b = 32 + 4 * n
        for k in range(4): a(f"v_xor_b32 v{b+k}, s{64+k}, v{b+k}")
        if n == 0: A(f"v_or3_b32 v20, v{b}, v{b+1}, v{b+2}", f"v_or_b32 v20, v20, v{b+3}")
        else: A(f"v_or3_b32 v20, v{b}, v{b+1}, v20", f"v_or3_b32 v20, v{b+2}, v{b+3}, v20")
        if n == 1: A("v_pk_add_f32 v[48:49], v[32:33], v[36:37]", "v_pk_add_f32 v[50:51], v[34:35], v[38:39]")
        if n >= 2: A(f"v_pk_add_f32 v[48:49], v[48:49], v[{b}:{b+1}]", f"v_pk_add_f32 v[50:51], v[50:51], v[{b+2}:{b+3}]")
    A(f"v_and_b32 v20, {TM:#x}, v20", "v_cmp_ne_u32 vcc, 0, v20", "s_cbranch_vccnz L_fretry")
    lab("L_fpoll_done")
    redscat(48)
    A("v_cvt_pk_bf16_f32 v48, v48, v48", "buffer_store_short v48, v14, s[48:51], s46 offen")
    c("every WG has read the epoch by now: advance it")
    A("s_cmp_lg_u32 s46, 0", "s_cbranch_scc1 L_fin", "s_mov_b64 exec, 1", "buffer_store_dword v27, v28, s[52:55], 0 offen", "s_branch L_fin")
    lab("L_flag")
    A("s_mov_b64 exec, 1", "buffer_store_dword v27, v28, s[52:55], s57 offen sc1", "s_mov_b64 exec, -1", "s_branch L_noflag")
    lab("L_oretry")
    A("s_mov_b64 exec, vcc", "s_bcnt1_i32_b64 s61, vcc", f"s_cmp_le_u32 s61, {othr}", "s_cbranch_scc1 L_opoll_ns", f"s_sleep {osleep}")
    lab("L_opoll_ns")
    A("s_sub_u32 s59, s59, 1", "s_cbranch_scc0 L_opoll", "s_branch L_opoll_done")
    lab("L_fretry")
    A("s_sub_u32 s59, s59, 1", "s_cbranch_scc0 L_fpoll", "s_branch L_fpoll_done")

    c("================================ V-waves ================================")
    lab("L_vwave")
    a("s_setprio 3")
    c("pull the kernel's code into this XCD's L2")
    A("s_cmp_ge_u32 s32, 3", "s_cbranch_scc1 L_nopf", "s_getpc_b64 s[60:61]")
    lab("L_pc")
    A(f"s_sub_u32 s60, s60, L_pc-{KN}", "s_subb_u32 s61, s61, 0", "s_lshl_b32 s62, s32, 2", "s_add_u32 s62, s62, s33", "s_lshl_b32 s62, s62, 10",
      "v_lshl_add_u32 v8, v2, 4, s62", f"v_min_u32 v8, L_end-{KN}-12, v8", "global_load_dwordx4 v[252:255], v8, s[60:61]")
    lab("L_nopf")
    A(f"v_mov_b32 v5, {L_FL}", "v_mov_b32 v8, 0", "v_mov_b32 v9, 0", "v_mov_b32 v10, 0", "v_mov_b32 v11, 0",
      "ds_write_b128 v5, v[8:11]", "ds_write_b128 v5, v[8:11] offset:16", "ds_write_b128 v5, v[8:11] offset:32")
    c("q projection piece: column block s70 (64 columns), s69 units of 32 rows starting at row s71/2")
    A("v_lshrrev_b32 v6, 3, v2", "v_and_b32 v7, 7, v2", "v_lshlrev_b32 v12, 13, v6", "v_lshl_add_u32 v12, v7, 4, v12", "v_lshlrev_b32 v13, 1, v6")
    ne_tab = sum(v << (8 * i) for i, v in enumerate(nE))
    A("s_lshr_b32 s63, s31, 1", "s_lshl_b32 s60, s63, 5", "s_add_u32 s60, s60, s32", "s_sub_u32 s60, s60, 16",
      "s_mul_i32 s61, s60, 147", "s_lshr_b32 s61, s61, 10", "s_mul_i32 s62, s61, 7", "s_sub_u32 s62, s60, s62",
      "s_cmp_ge_u32 s62, 3", "s_addc_u32 s62, s62, 0", "s_lshl_b32 s61, s61, 3", "s_add_u32 s70, s61, s62",
      "s_lshl_b32 s63, s63, 3", f"s_mov_b32 s61, {ne_tab:#x}", "s_lshr_b32 s61, s61, s63", "s_and_b32 s69, s61, 0xff",
      "s_lshl_b32 s61, s32, 3", "s_add_u32 s61, s61, 3",
      "s_cmp_lt_i32 s60, 0", "s_cselect_b32 s70, s61, s70", f"s_cselect_b32 s69, {nE3}, s69",
      "s_sub_u32 s61, 14, s69", "s_bitcmp1_b32 s31, 0", "s_cselect_b32 s71, s69, 0", "s_cselect_b32 s69, s61, s69",
      "s_lshl_b32 s71, s71, 6", "s_lshl_b32 s61, s33, 4", "s_add_u32 s71, s71, s61")
    A("s_and_b32 s61, s70, 63", "s_lshl_b32 s61, s61, 7", "s_lshl_b32 s62, s71, 12", "s_add_u32 s61, s61, s62",
      "s_mov_b32 s50, 896", "s_mov_b32 s51, 0x20000", "s_mov_b32 s46, 3670016", "s_mov_b32 s47, 0x20000")
    a("s_waitcnt lgkmcnt(0)")
    A("s_load_dword s56, s[28:29], 0",
      "s_cmp_ge_u32 s70, 64", "s_cselect_b32 s44, s20, s10", "s_cselect_b32 s45, s21, s11", "s_cselect_b32 s48, s14, s4", "s_cselect_b32 s49, s15, s5")
    if eb0: a("s_barrier                 ; B0")
    WQ = 96; XR = 24
    NU = max(max(nE), 14 - min(nE), nE3, 14 - nE3)
    for n in range(NU):
        A(f"s_cmp_le_u32 s69, {n}", "s_cbranch_scc1 L_wqdone",
          f"buffer_load_dwordx4 v[{WQ+4*n}:{WQ+4*n+3}], v12, s[44:47], s61 offen nt", f"buffer_load_ushort v{XR+n}, v13, s[48:51], s71 offen offset:{n*64}")
        if n < NU - 1: a(f"s_add_u32 s61, s61, {32*8192}")
    lab("L_wqdone")
    if not eb0: a("s_barrier                 ; B0")
    c("V lane layout: lane (g, c) reads key g, 16 B chunk c; Wo: rows 8g+t, 128 columns per wave (64 for wave 3)")
    A("s_mov_b32 s36, s8", "s_mov_b32 s37, s9", "s_mov_b32 s40, s18", "s_mov_b32 s41, s19", "s_mov_b32 s52, s28", "s_mov_b32 s53, s29")
    A("v_lshlrev_b32 v14, 9, v3", "v_lshl_add_u32 v14, v4, 4, v14")
    A("s_cmp_ge_u32 s32, 16", "s_cselect_b32 s44, s22, s12", "s_cselect_b32 s45, s23, s13")
    A("s_and_b32 s48, s32, 15", "s_lshl_b32 s48, s48, 5", "s_lshl_b32 s62, s31, 9", "s_add_u32 s48, s48, s62", "s_mul_i32 s48, s48, 896",
      "s_lshl_b32 s62, s33, 8", "s_add_u32 s48, s48, s62", "s_add_u32 s49, s48, 3584",
      "s_cmp_eq_u32 s33, 3", "s_cselect_b32 s62, 7, 15", "s_cselect_b32 s58, 0x00ff00ff, -1")
    A("v_mul_u32_u24 v15, 7168, v3", "v_lshl_add_u32 v15, v4, 4, v15", "v_cmp_lt_u32 vcc, s62, v4", "v_mov_b32 v8, 0x40000000"); nop(1)
    a("v_cndmask_b32 v15, v15, v8, vcc")
    if tlb:
        c("first touch of the pages this CU needs later (address translation warm-up, values unused)")
        a("s_mov_b64 exec, 1")
        if tlb & 1: A("buffer_load_dword v40, v14, s[36:39], s34 offen nt", "buffer_load_dword v41, v14, s[40:43], s35 offen nt", "buffer_load_dword v42, v15, s[44:47], s48 offen nt")
        if tlb & 2: A(f"s_mov_b32 s62, {XG + 0x4000}", "buffer_load_dword v43, v14, s[52:55], s62 offen", "global_load_dword v44, v14, s[24:25]")
        a("s_mov_b64 exec, -1")
    a("s_waitcnt lgkmcnt(0)")
    maketag()
    AC = 16
    for k in range(8): a(f"v_mov_b32 v{AC+k}, 0")
    a("s_waitcnt vmcnt(0)")
    for n in range(NU):
        A(f"s_cmp_le_u32 s69, {n}", "s_cbranch_scc1 L_fmadone", f"v_lshlrev_b32 v{XR+n}, 16, v{XR+n}")
        for k in range(4):
            w = WQ + 4 * n + k
            A(f"v_lshlrev_b32 v8, 16, v{w}", f"v_and_b32 v9, 0xffff0000, v{w}", f"v_fmac_f32 v{AC+2*k}, v8, v{XR+n}", f"v_fmac_f32 v{AC+2*k+1}, v9, v{XR+n}")
    lab("L_fmadone")
    allred("add", [AC + k for k in range(8)], ["row_ror:8"], [], [])
    A("s_lshl_b32 s61, s33, 10", f"s_add_u32 s61, s61, {L_QP}", "v_lshlrev_b32 v8, 8, v3", "v_lshl_add_u32 v8, v7, 5, v8", "v_add_u32 v8, s61, v8")
    setexec(0x00ff00ff, 0x00ff00ff)
    A(f"ds_write_b128 v8, v[{AC}:{AC+3}]", f"ds_write_b128 v8, v[{AC+4}:{AC+7}] offset:16")
    A("s_mov_b64 exec, 1", "v_mov_b32 v9, 1", "s_waitcnt lgkmcnt(0)", "ds_add_rtn_u32 v10, v5, v9", "s_waitcnt lgkmcnt(0)",
      "s_mov_b64 exec, -1", "v_readfirstlane_b32 s61, v10", "s_cmp_lg_u32 s61, 3", "s_cbranch_scc1 L_vload")
    c("last V-wave: sum the 16 partial rows and publish this piece of q")
    A("v_lshlrev_b32 v8, 10, v3", "v_lshl_add_u32 v8, v4, 4, v8")
    for k in range(4): a(f"ds_read_b128 v[{16+4*k}:{19+4*k}], v8 offset:{L_QP + k*256}")
    a("s_waitcnt lgkmcnt(0)")
    for k in range(4): A(f"v_add_f32 v{16+k}, v{16+k}, v{20+k}", f"v_add_f32 v{24+k}, v{24+k}, v{28+k}")
    for k in range(4): a(f"v_add_f32 v{16+k}, v{16+k}, v{24+k}")
    allred("add", [16, 17, 18, 19], [], [20, 21, 22, 23], [16, 32])
    A("s_bfe_u32 s61, s70, 0x30003", "s_lshl_b32 s61, s61, 13", "s_lshr_b32 s62, s70, 6", "s_lshl_b32 s62, s62, 12", "s_add_u32 s61, s61, s62",
      "s_and_b32 s62, s70, 7", "s_lshl_b32 s62, s62, 8", "s_add_u32 s61, s61, s62", "s_and_b32 s62, s31, 1", "s_lshl_b32 s62, s62, 11", "s_add_u32 s61, s61, s62",
      f"s_add_u32 s61, s61, {X1}", "v_lshlrev_b32 v8, 4, v4", "v_mov_b32 v9, 0xff")
    pack(16, 16, 9)
    setexec(0xffff, 0)
    A("buffer_store_dwordx4 v[16:19], v8, s[52:55], s61 offen sc1", "s_mov_b64 exec, -1")
    lab("L_vload")
    a("s_setprio 1")
    VB = 96; WB = 16; PB_ = 48; OD = 76; AB = 68
    vl = []; reg = VB
    for br, npc, srd, so in ((0, 16, 36, 34), (1, 4, 40, 35)):
        for i in range(npc):
            for hf in range(2):
                pre = [f"s_xor_b32 s57, s{so}, {i << 13}"] if hf == 0 else []
                vl.append(pre + [f"buffer_load_dwordx4 v[{reg}:{reg+3}], v14, s[{srd}:{srd+3}], s57 offen offset:{hf*256} nt"]); reg += 4
    wo = [[f"buffer_load_dwordx4 v[{WB+4*t}:{WB+4*t+3}], v15, s[44:47], s{48 if t < 4 else 49} offen offset:{(t&3)*896} nt"] for t in range(8)]
    issue = vl[:2*wo_at] + wo[:wo_pre] + vl[2*wo_at:] + wo[wo_pre:]
    vpos = [k if k < 2*wo_at else k + wo_pre for k in range(40)]
    c("v8..v11: masks that place p at position lane&7 of the A row (head, i'); addresses for the tail")
    A("v_and_b32 v12, 1, v2", "v_lshlrev_b32 v12, 4, v12", "v_mov_b32 v13, 0xffff", "v_lshlrev_b32 v12, v12, v13", "v_bfe_u32 v13, v2, 1, 2")
    for j in range(4):
        a(f"v_cmp_eq_u32 vcc, {j}, v13"); nop(2); a(f"v_cndmask_b32 v{8+j}, 0, v12, vcc")
    A("s_lshl_b32 s61, s33, 12", "v_lshl_add_u32 v92, v2, 4, s61", "s_lshl_b32 s61, s33, 10", "v_lshl_add_u32 v93, v2, 4, s61",
      "s_lshr_b32 s61, s33, 1", "s_lshl_b32 s62, s61, 5", f"s_add_u32 s62, s62, {L_C}", "v_lshrrev_b32 v12, 5, v2", "v_lshl_add_u32 v94, v12, 4, s62",
      "s_lshl_b32 s61, s61, 4", "s_and_b32 s62, s33, 1", "s_lshl_b32 s62, s62, 2", "s_add_u32 s61, s61, s62",
      "v_lshrrev_b32 v13, 2, v4", "v_lshl_add_u32 v13, v12, 3, v13", "v_add_u32 v13, s61, v13",
      "v_add_u32 v1, s32, v13", "v_and_b32 v1, 31, v1", "v_lshlrev_b32 v1, 7, v1", "v_lshl_add_u32 v95, v13, 12, v1",
      "v_and_b32 v13, 3, v2", "v_lshl_add_u32 v95, v13, 5, v95", "v_and_b32 v13, 1, v3", "v_lshl_add_u32 v95, v13, 4, v95",
      "s_lshl_b32 s61, s31, 17", f"s_add_u32 s70, s61, {X3}", f"v_mov_b32 v5, {TM:#x}",
      "s_lshr_b32 s61, s32, 4", "s_lshl_b32 s61, s61, 7", "s_lshl_b32 s62, s31, 4", "s_add_u32 s61, s61, s62", "s_and_b32 s62, s32, 15", "s_add_u32 s61, s61, s62",
      "s_and_b32 s62, s61, 3", "s_lshr_b32 s61, s61, 2", "s_lshl_b32 s61, s61, 14", "s_mul_i32 s62, s62, 1920", "s_add_u32 s61, s61, s62",
      "s_lshl_b32 s62, s33, 9", "s_add_u32 s61, s61, s62", f"s_add_u32 s71, s61, {X4 + side*8192}",
      "v_lshlrev_b32 v6, 5, v4", "v_lshl_add_u32 v6, v13, 4, v6", "v_lshlrev_b32 v7, 4, v2")
    a("s_barrier                 ; B1")
    def pwait():
        c("p of the partner K-wave")
        A("s_lshl_b32 s61, s33, 2", f"s_add_u32 s61, s61, {L_FL+8}", "v_mov_b32 v12, s61", f"s_mov_b32 s59, {SPIN*100}")
        lab("L_pwait")
        A("ds_read_b32 v13, v12", "s_waitcnt lgkmcnt(0)", "v_readfirstlane_b32 s69, v13",
          "s_sub_u32 s59, s59, 1", "s_cbranch_scc1 L_pwait_done", "s_cmp_eq_u32 s69, 0", "s_cbranch_scc1 L_pwait")
        lab("L_pwait_done")
        A("v_bfe_u32 v12, v2, 3, 1", "v_lshl_add_u32 v12, v12, 2, v3", "s_lshl_b32 s61, s33, 10", f"s_add_u32 s61, s61, {L_P}",
          "v_lshl_add_u32 v13, v12, 6, s61", "v_lshl_add_u32 v12, v12, 4, s61")
        for k in range(4): a(f"ds_read_b128 v[{PB_+4*k}:{PB_+4*k+3}], v13 offset:{16*k}")
        A(f"ds_read_b128 v[{PB_+16}:{PB_+19}], v12 offset:512", "s_waitcnt lgkmcnt(0)")
    def pv(step, issued):
        br, b = (0, step) if step < 16 else (1, step - 16)
        n = b >> 1; t = b & 1
        p = PB_ + (t * 8 + n if br == 0 else 16 + t * 2 + n)
        ab = AB + (step & 1) * 4
        for j in range(4): a(f"v_and_b32 v{ab+j}, v{p}, v{8+j}")
        A(f"s_waitcnt vmcnt({issued - 1 - vpos[2*step+1]})", "s_nop 0")
        for hf in range(2):
            d = OD + (br * 2 + hf) * 4; r = VB + (2 * step + hf) * 4
            cc = "0" if b == 0 else f"v[{d}:{d+3}]"
            a(f"v_mfma_f32_16x16x32_bf16 v[{d}:{d+3}], v[{ab}:{ab+3}], v[{r}:{r+3}], {cc}")
        if step == 17:
            for k in range(2): a(f"ds_write_b128 v92, v[{OD+4*k}:{OD+4*k+3}] offset:{L_OP + k*1024}")
    ns = 0; havep = False
    for ni0, ins in enumerate(issue):
        NVc = NV2 if (NV2 and ni0 >= 48 - late) else NV
        if ni0 >= NVc: a(f"s_waitcnt vmcnt({NVc-1})")
        A(*ins); ni = ni0 + 1
        if ni == trig: A("s_lshl_b32 s61, s33, 2", f"s_add_u32 s61, s61, {L_FL+32}", "v_mov_b32 v12, s61", "ds_write_b32 v12, v12")
        if ni == 48: stamp(3)
        if ni == 2 * p0: pwait(); havep = True
        for _ in range(pvs):
            if havep and ns < 20 and vpos[2*ns+1] < ni - NVc:
                pv(ns, ni); ns += 1
    while ns < 20:
        pv(ns, 48); ns += 1
    nop(7)
    for k in range(2, 4): a(f"ds_write_b128 v92, v[{OD+4*k}:{OD+4*k+3}] offset:{L_OP + k*1024}")
    a("s_waitcnt lgkmcnt(0)")
    a("s_barrier                 ; B3")
    c("combine the 4 waves' partials (rescaled to the WG max) and publish X3")
    T = 96
    A(f"ds_read_b32 v13, v7 offset:{L_FL+28}", f"ds_read_b128 v[{T+16}:{T+19}], v94")
    for k in range(4): a(f"ds_read_b128 v[{T+4*k}:{T+4*k+3}], v93 offset:{L_OP + k*4096}")
    for k in range(4):
        a(f"s_waitcnt lgkmcnt({3-k})")
        if k == 0: a("v_readfirstlane_b32 s61, v13")
        if k == 1: a("s_cmp_eq_u32 s61, 0")
        cp = T + 16 + (k & 2); sel = k & 1
        for m in (0, 2):
            if k == 0: a(f"v_pk_mul_f32 v[{T+20+m}:{T+21+m}], v[{T+m}:{T+m+1}], v[{cp}:{cp+1}] op_sel:[0,{sel}] op_sel_hi:[1,{sel}]")
            else: a(f"v_pk_fma_f32 v[{T+20+m}:{T+21+m}], v[{T+4*k+m}:{T+4*k+m+1}], v[{cp}:{cp+1}], v[{T+20+m}:{T+21+m}] op_sel:[0,{sel},0] op_sel_hi:[1,{sel},1]")
    pack(T + 20, T + 20, 5)
    a("s_cbranch_scc0 L_x3slow")
    a(f"buffer_store_dwordx4 v[{T+20}:{T+23}], v95, s[52:55], s70 offen")
    lab("L_x3done")
    if vflag: A("s_lshl_b32 s63, s32, 2", "s_add_u32 s63, s63, s33", "s_mul_i32 s60, s31, 384", f"s_add_u32 s60, s60, {XG + side*8192}", "v_mov_b32 v12, s56")
    if ob == 1: A("s_waitcnt vmcnt(0)", "s_barrier                 ; B35")
    elif ob == 2: A("s_waitcnt vmcnt(1)", "s_barrier                 ; B35")
    else: a("s_waitcnt vmcnt(1)")
    a("s_barrier                 ; B4")
    c("out projection of this WG's 32 rows, publish X4")
    AO = T + 32
    for t in range(8): a(f"ds_read_b128 v[{AO+4*t}:{AO+4*t+3}], v7 offset:{L_AO + t*1024}")
    for t in range(8):
        a(f"s_waitcnt lgkmcnt({7-t})")
        cc = "0" if t == 0 else f"v[{T}:{T+3}]"
        a(f"v_mfma_f32_16x16x32_bf16 v[{T}:{T+3}], v[{AO+4*t}:{AO+4*t+3}], v[{WB+4*t}:{WB+4*t+3}], {cc}")
    A("s_mov_b32 exec_lo, s58", "s_mov_b32 exec_hi, 0")
    nop(6)
    pack(T + 4, T, 5)
    a(f"buffer_store_dwordx4 v[{T+4}:{T+7}], v6, s[52:55], s71 offen sc1")
    if vflag:
        A("s_cmp_lg_u32 s63, 3", "s_cbranch_scc1 L_fin", "s_mov_b64 exec, 1", "buffer_store_dword v12, v7, s[52:55], s60 offen sc1")
    lab("L_fin")
    if mini:
        A("s_cmp_lg_u32 s30, 0", "s_cbranch_scc1 L_end", "s_mov_b64 exec, -1")
        stamp(9)
        A("s_waitcnt lgkmcnt(0)", "s_lshl_b32 s61, s2, 9", f"s_add_u32 s61, s61, {STAMP}", "v_mov_b32 v32, s72", "v_mov_b32 v33, s90", "v_mov_b32 v1, 0", "s_mov_b64 exec, 1",
          "buffer_store_dwordx2 v[32:33], v1, s[52:55], s61 offen")
    elif stamps:
        a("s_mov_b64 exec, -1")
        stamp(9)
        a("s_waitcnt lgkmcnt(0)")
        A("s_lshl_b32 s61, s2, 3", "s_add_u32 s61, s61, s30", "s_lshl_b32 s61, s61, 6", f"s_add_u32 s61, s61, {STAMP}")
        for k in range(10): a(f"v_mov_b32 v{32+k}, s{72+2*k}")
        A("s_getreg_b32 s62, hwreg(HW_REG_XCC_ID)", "v_mov_b32 v42, s62", "v_mov_b32 v43, s59", "v_mov_b32 v1, 0", "s_mov_b64 exec, 1")
        for k in range(3): a(f"buffer_store_dwordx4 v[{32+4*k}:{35+4*k}], v1, s[52:55], s61 offen offset:{16*k}")
    lab("L_end"); a("s_endpgm")
    lab("L_x3slow")
    A(f"buffer_store_dwordx4 v[{T+20}:{T+23}], v95, s[52:55], s70 offen sc1", "s_branch L_x3done")
    L.append('.section .rodata,"a"'); L.append(".p2align 6"); L.append(f".amdhsa_kernel {KN}")
    for s in ("next_free_vgpr 256", "next_free_sgpr 96", "accum_offset 256", "group_segment_fixed_size 0", "kernarg_size 104", "user_sgpr_count 2", "user_sgpr_kernarg_segment_ptr 1", "system_sgpr_workgroup_id_x 1"):
        L.append("  .amdhsa_" + s)
    L.append(".end_amdhsa_kernel")
    open(name, "w").write("\n".join(L) + "\n")

if __name__ == "__main__":
    gen("U.s"); gen("U_diag.s", diag=True)
    for r in "ab":
        gen(f"U7{r}.s", nE=(7,7,7,7)); gen(f"U5{r}.s", nE=(5,5,5,5)); gen(f"U9{r}.s")
```

```python
import sys, math, struct
KN = "concat_heads__gqa_block_cached__sliding_block_cached__decode_kernel"
HDR = open("concat_heads__gqa_block_cached__sliding_block_cached__decode.s.ref").read().split("; Override")[0]

X2 = 0x4000
X1 = 0x10000
X3 = 0x40000
X4 = 0x200000
XG = 0x300000
STAMP = 0x8000000
L_OP = 0; L_QP = 0; L_P = 0x4000; L_Q = 0x5000; L_C = 0x5800; L_FL = 0x5840; L_ML = 0x5900; L_AO = 0x6000
LDS_BYTES = 0x8000
SPIN = 20000
DPP = "row_mask:0xf bank_mask:0xf"
TB = 10; TM = (1 << TB) - 1

DOC = """; ---------------------------------------------------------------------------------------------
; ---------------------------------------------------------------------------------------------"""

def gen(name, stamps=False, NK=6, NV=6, nE=(9, 9, 9, 9), nE3=7, p0=12, wo_at=16, wo_pre=1, trig=30, qsleep=4, osleep=4, othr=8,
        odelay=11, gdelay=5, remap=False, force=False, side=0, ob=0, vflag=False, NV2=0, late=8, rs=0, mini=False, tlb=0, eb0=False, pvs=1, qe=0, skew=0, diag=False, leak=False):
    L = []
    def a(s): L.append("  " + s)
    def A(*ss):
        for s in ss: a(s)
    def c(s): L.append("  ; " + s)
    def lab(s): L.append(s + ":")
    def nop(n): a(f"s_nop {n-1}")
    def stamp(k):
        if stamps and k in (0, 3, 9): a(f"s_memrealtime s[{72+2*k}:{73+2*k}]")
    def setexec(lo, hi): A(f"s_mov_b32 exec_lo, {lo:#x}", f"s_mov_b32 exec_hi, {hi:#x}")
    def allred(op, regs, dpps, tmp, swaps):
        for r in dpps:
            nop(2)
            for x in regs: a(f"v_{op}_f32_dpp v{x}, v{x}, v{x} {r} {DPP}")
        for sw in swaps:
            for x, t in zip(regs, tmp): a(f"v_mov_b32 v{t}, v{x}")
            nop(2)
            for x, t in zip(regs, tmp): a(f"v_permlane{sw}_swap_b32 v{x}, v{t}")
            nop(1)
            for x, t in zip(regs, tmp): a(f"v_{op}_f32 v{x}, v{x}, v{t}")
    def maketag():
        c("s56 = launch tag (LCG step of the epoch word), s64..s67 = 10-bit per-dword tags")
        A("s_mul_i32 s56, s56, 0x9E3779B1", "s_add_u32 s56, s56, 0x7F4A7C15", "s_mul_i32 s67, s56, 0x85EBCA6B",
          f"s_and_b32 s64, s56, {TM:#x}", f"s_bfe_u32 s65, s56, {(TB << 16) | 11:#x}", f"s_lshr_b32 s66, s56, {32-TB}", f"s_lshr_b32 s67, s67, {32-TB}")
    def tagcheck(bases, t, m=TM):
        first = True
        for b in bases:
            for k in range(4):
                if first: a(f"v_xor_b32 v{t}, s{64+k}, v{b+k}"); first = False
                else: a(f"v_bitop3_b32 v{t}, v{b+k}, s{64+k}, v{t} bitop3:0xbe")
        a(f"v_and_b32 v{t}, {m:#x}, v{t}")
    def pack(dst, src, m):
        for k in range(4): a(f"v_bfi_b32 v{dst+k}, v{m}, s{64+k}, v{src+k}")
    def redscat(g):
        A(f"v_permlane32_swap_b32 v{g}, v{g+1}", f"v_permlane32_swap_b32 v{g+2}, v{g+3}", f"v_add_f32 v{g}, v{g}, v{g+1}", f"v_add_f32 v{g+2}, v{g+2}, v{g+3}"); nop(2)
        a(f"v_permlane16_swap_b32 v{g}, v{g+2}"); nop(1)
        a(f"v_add_f32 v{g}, v{g}, v{g+2}")
        allred("add", [g], ["row_ror:8", "row_ror:4", "row_ror:2"], [], [])
    X1Q, X2Q = "quad_perm:[1,0,3,2]", "quad_perm:[2,3,0,1]"

    L.append(HDR.rstrip())
    L.append(f"; @launch grid=(256,1,1) block=(512,1,1) lds={LDS_BYTES}")
    L.append(DOC)
    L.append('.amdgcn_target "amdgcn-amd-amdhsa--gfx950"')
    L.append(".text"); L.append(f".globl {KN}"); L.append(".p2align 8"); L.append(f".type {KN},@function"); lab(KN)
    A("s_cmp_ge_u32 s2, 256", "s_cbranch_scc1 L_end")
    A("s_load_dwordx16 s[4:19], s[0:1], 0", "s_load_dwordx8 s[20:27], s[0:1], 64", "s_load_dwordx2 s[28:29], s[0:1], 96")
    if remap: A("s_and_b32 s3, s2, 31", "s_lshl_b32 s3, s3, 3", "s_lshr_b32 s2, s2, 5", "s_or_b32 s2, s2, s3")
    stamp(0)
    if diag: a("s_memrealtime s[72:73]")
    if skew:
        A("s_bitcmp0_b32 s2, 1", "s_cbranch_scc1 L_nsk", f"s_sleep {skew}")
        lab("L_nsk")
    c("v2 = lane, v3 = lane>>4, v4 = lane&15; s30 = wave, s31 = h, s32 = s, s33 = wave&3")
    A("v_lshrrev_b32 v1, 6, v0", "v_and_b32 v2, 63, v0", "s_and_b32 s31, s2, 7", "v_readfirstlane_b32 s30, v1", "s_lshr_b32 s32, s2, 3",
      "v_lshrrev_b32 v3, 4, v2", "v_and_b32 v4, 15, v2", "s_and_b32 s33, s30, 3")
    c("s34/s35 = K/V byte offsets of branch A/B; 2 KB pieces interleaved over the 4 waves, order xor-scrambled per WG")
    A("s_lshl_b32 s57, s31, 22", "s_lshl_b32 s58, s33, 11", "s_add_u32 s57, s57, s58", "s_mul_i32 s58, s2, 0x9e3779b1", "s_lshr_b32 s58, s58, 7",
      "s_lshl_b32 s35, s32, 15", "s_add_u32 s35, s35, s57", "s_and_b32 s59, s58, 0x6000", "s_add_u32 s35, s35, s59", "s_add_u32 s35, s35, 0x300000",
      "s_lshl_b32 s34, s32, 17", "s_add_u32 s34, s34, s57", "s_and_b32 s59, s58, 0x1e000", "s_add_u32 s34, s34, s59")
    A("s_mov_b32 s38, 0x2000000", "s_mov_b32 s39, 0x20000", "s_mov_b32 s42, 0x2000000", "s_mov_b32 s43, 0x20000",
      "s_mov_b32 s54, 0x10000000", "s_mov_b32 s55, 0x20000")
    A("s_cmp_ge_u32 s30, 4", "s_cbranch_scc1 L_vwave")

    c("================================ K-waves ================================")
    KB = 96
    a("s_setprio 1")
    c("K lane layout: lane (g, key4, sub) reads key4*512 + g*64 + sub*16 (+256 for the second half row)")
    A("v_bfe_u32 v5, v2, 2, 2", "v_and_b32 v6, 3, v2", "v_lshlrev_b32 v7, 6, v3", "v_lshl_add_u32 v7, v6, 4, v7", "v_lshl_add_u32 v7, v5, 9, v7")
    a("s_waitcnt lgkmcnt(0)")
    A("s_mov_b32 s36, s6", "s_mov_b32 s37, s7", "s_mov_b32 s40, s16", "s_mov_b32 s41, s17")
    reg = KB; cnt = 0
    for br, npc, srd, so in ((0, 16, 36, 34), (1, 4, 40, 35)):
        for i in range(npc):
            a(f"s_xor_b32 s57, s{so}, {i << 13}")
            for j in range(2):
                if cnt >= NK: a(f"s_waitcnt vmcnt({NK-1})")
                a(f"buffer_load_dwordx4 v[{reg}:{reg+3}], v7, s[{srd}:{srd+3}], s57 offen offset:{j*256} nt"); reg += 4; cnt += 1
            if cnt == 4:
                c("epoch word; bring this WG's X3 lines into L2 (value unused)")
                A("s_load_dword s56, s[28:29], 0", "s_mov_b32 s52, s28", "s_mov_b32 s53, s29",
                  "s_lshl_b32 s61, s31, 5", "s_add_u32 s61, s61, s32", "s_lshl_b32 s61, s61, 12", "s_lshl_b32 s62, s33, 10", "s_add_u32 s61, s61, s62", f"s_add_u32 s61, s61, {X3}",
                  "v_lshlrev_b32 v8, 4, v2", "buffer_load_dwordx4 v[12:15], v8, s[52:55], s61 offen sc1",
                  *(["s_mov_b64 exec, 1", "buffer_load_dword v9, v8, s[40:43], s35 offen nt", "s_mov_b64 exec, -1"] if tlb & 1 else []), "s_barrier")
    a("s_barrier")
    c("gather q (wave = branch*2+head): add the two partials, round to bf16, share through LDS")
    A("v_bfe_u32 v8, v2, 2, 1", "v_lshlrev_b32 v8, 9, v8", "v_lshl_add_u32 v8, v3, 6, v8", "v_lshl_add_u32 v8, v6, 4, v8", f"v_mov_b32 v9, {L_FL+24}")
    A("v_lshlrev_b32 v12, 4, v2", "s_lshl_b32 s58, s31, 13", "s_lshr_b32 s61, s33, 1", "s_lshl_b32 s61, s61, 12", "s_add_u32 s58, s58, s61",
      "s_and_b32 s61, s33, 1", "s_lshl_b32 s61, s61, 10", "s_add_u32 s58, s58, s61", f"s_add_u32 s58, s58, {X1}",
      "s_lshl_b32 s61, s33, 9", f"s_add_u32 s61, s61, {L_Q}", "v_lshl_add_u32 v13, v2, 3, s61", "v_mov_b32 v14, 1",
      "s_getreg_b32 s68, hwreg(HW_REG_XCC_ID, 0, 4)")
    a("s_waitcnt lgkmcnt(0)")
    maketag()
    A(f"s_mov_b32 s59, {SPIN}", "s_branch L_qpoll1")
    lab("L_qpoll")
    a(f"s_sleep {qsleep}")
    lab("L_qpoll1")
    A("buffer_load_dwordx4 v[16:19], v12, s[52:55], s58 offen sc1", "buffer_load_dwordx4 v[20:23], v12, s[52:55], s58 offen offset:2048 sc1", "s_waitcnt vmcnt(0)")
    tagcheck([16, 20], 10, 0xff)
    A("v_cmp_ne_u32 vcc, 0, v10", "s_sub_u32 s59, s59, 1", "s_cbranch_scc1 L_qpoll_done", "s_cbranch_vccnz L_qpoll")
    lab("L_qpoll_done")
    for k in range(8): a(f"v_and_b32 v{16+k}, 0xffffff00, v{16+k}")
    for k in range(4): a(f"v_add_f32 v{16+k}, v{16+k}, v{20+k}")
    A("v_cvt_pk_bf16_f32 v16, v16, v17", "v_cvt_pk_bf16_f32 v17, v18, v19", "ds_write_b64 v13, v[16:17]")
    A("s_mov_b64 exec, 1", "s_waitcnt lgkmcnt(0)", "ds_add_u32 v9, v14", "s_mov_b64 exec, -1", f"s_mov_b32 s59, {SPIN*100}")
    lab("L_qwait")
    A("ds_read_b32 v10, v9", "s_waitcnt lgkmcnt(0)", "v_readfirstlane_b32 s61, v10",
      "s_sub_u32 s59, s59, 1", "s_cbranch_scc1 L_qwait_done", "s_cmp_lt_u32 s61, 4", "s_cbranch_scc1 L_qwait")
    lab("L_qwait_done")
    QG = 16; FB = 48; DB = 8; SB = 80
    c("A operands: row (t, head, sub') = 8 q values; rows of the other key block t are zero")
    for br in range(2):
        for j in range(2):
            r = QG + (br * 2 + j) * 4
            a(f"ds_read_b128 v[{r}:{r+3}], v8 offset:{L_Q + br*1024 + j*256}")
    A("s_mov_b32 s60, 0x00ff00ff", "s_mov_b32 s61, 0x00ff00ff", "s_mov_b32 s62, 0xff00ff00", "s_mov_b32 s63, 0xff00ff00")
    a("s_waitcnt lgkmcnt(0)")
    for br in range(2):
        for j in range(2):
            for t in range(2):
                for k in range(4):
                    a(f"v_cndmask_b32 v{FB + ((br*2+j)*2+t)*4 + k}, 0, v{QG + (br*2+j)*4 + k}, s[{60+2*t}:{61+2*t}]")
    nop(2)
    c("QK^T: 8 keys per accumulator; the score is the sum of the diagonal sub == sub' inside each quad")
    reg = KB
    for br, ngrp in ((0, 8), (1, 2)):
        for n in range(ngrp):
            d = DB + (br * 8 + n) * 4
            first = True
            for t in range(2):
                for j in range(2):
                    f = FB + ((br * 2 + j) * 2 + t) * 4
                    cc = "0" if first else f"v[{d}:{d+3}]"
                    a(f"v_mfma_f32_16x16x32_bf16 v[{d}:{d+3}], v[{f}:{f+3}], v[{reg}:{reg+3}], {cc}")
                    first = False; reg += 4
    nop(8)
    for k in range(4):
        for n in range(10):
            d = DB + n * 4
            if k == 0: a(f"v_mov_b32_dpp v{SB+n}, v{d} quad_perm:[0,0,0,0] {DPP}")
            else: a(f"v_add_f32_dpp v{SB+n}, v{d+k}, v{SB+n} quad_perm:[{k},{k},{k},{k}] {DPP}")
    c("scores are bf16 in the reference; wave-local max (v8: A, v10: B), p = exp2((s - max) * log2e/16)")
    for n in range(10): a(f"v_cvt_pk_bf16_f32 v{SB+n}, v{SB+n}, v{SB+n}")
    for n in range(10): a(f"v_and_b32 v{SB+n}, 0xffff0000, v{SB+n}")
    A(f"v_max3_f32 v8, v{SB}, v{SB+1}, v{SB+2}", f"v_max_f32 v10, v{SB+8}, v{SB+9}",
      f"v_max3_f32 v8, v8, v{SB+3}, v{SB+4}", f"v_max3_f32 v8, v8, v{SB+5}, v{SB+6}", f"v_max_f32 v8, v8, v{SB+7}")
    allred("max", [8, 10], ["row_ror:4", "row_ror:8"], [12, 13], [32])
    cb = struct.unpack("<I", struct.pack("<f", math.log2(math.e) / 16.0))[0]
    a(f"s_mov_b32 s69, {cb:#x}")
    for n in range(10): a(f"v_sub_f32 v{SB+n}, v{SB+n}, v{8 if n < 8 else 10}")
    for n in range(10): a(f"v_mul_f32 v{SB+n}, s69, v{SB+n}")
    for n in range(10): a(f"v_exp_f32 v{SB+n}, v{SB+n}")
    nop(1)
    for n in range(10): a(f"v_cvt_pk_bf16_f32 v{16+n}, v{SB+n}, v{SB+n}")
    A("v_bfe_u32 v26, v2, 2, 3", "v_lshrrev_b32 v27, 5, v2", "s_lshl_b32 s61, s33, 10", f"s_add_u32 s61, s61, {L_P}",
      "v_lshlrev_b32 v28, 2, v27", "v_lshl_add_u32 v28, v26, 3, v28", "v_lshl_add_u32 v29, v28, 3, s61", "v_lshl_add_u32 v30, v28, 1, s61")
    setexec(0x11111111, 0x11111111)
    A("ds_write_b128 v29, v[16:19]", "ds_write_b128 v29, v[20:23] offset:16", "ds_write_b64 v30, v[24:25] offset:512")
    a("s_mov_b64 exec, -1")
    A(f"v_add_f32 v9, v{SB}, v{SB+1}", f"v_add_f32 v11, v{SB+8}, v{SB+9}")
    for n in range(2, 8): a(f"v_add_f32 v9, v9, v{SB+n}")
    a("s_waitcnt lgkmcnt(0)")
    A("s_lshl_b32 s61, s33, 2", f"s_add_u32 s61, s61, {L_FL+8}", "v_mov_b32 v31, s61", "v_mov_b32 v32, 1", "ds_write_b32 v31, v32")
    allred("add", [9, 11], ["row_ror:4", "row_ror:8"], [12, 13], [32])
    A("v_and_b32 v20, 16, v2", "s_lshl_b32 s61, s33, 3", f"s_add_u32 s61, s61, {L_ML}", "v_lshl_add_u32 v20, v20, 1, s61")
    setexec(0x00010001, 0)
    A("ds_write_b64 v20, v[8:9]", "ds_write_b64 v20, v[10:11] offset:64")
    A("s_mov_b64 exec, 1", f"v_mov_b32 v21, {L_FL+4}", "s_waitcnt lgkmcnt(0)", "ds_add_rtn_u32 v22, v21, v32", "s_waitcnt lgkmcnt(0)",
      "s_mov_b64 exec, -1", "v_readfirstlane_b32 s61, v22")
    A("s_cmp_lg_u32 s61, 3", "s_cbranch_scc1 L_kjoin")
    c("last K-wave: WG max / sum, per-wave rescale factors -> LDS, publish X2")
    A("v_lshlrev_b32 v20, 3, v4", f"ds_read_b64 v[8:9], v20 offset:{L_ML}", "s_waitcnt lgkmcnt(0)", "v_mov_b32 v10, v8")
    allred("max", [10], [X1Q, X2Q], [], [])
    A("v_sub_f32 v8, v8, v10", "v_mul_f32 v8, s69, v8", "v_exp_f32 v8, v8", "v_lshlrev_b32 v20, 2, v4", "v_mul_f32 v11, v8, v9", f"ds_write_b32 v20, v8 offset:{L_C}")
    allred("add", [11], [X1Q, X2Q], [], [])
    A("v_mov_b32 v16, v10", "v_mov_b32 v17, s56", "v_and_b32 v18, -16, v11", "v_or_b32 v18, s68, v18", "v_mov_b32 v19, s56")
    A("s_lshl_b32 s57, s31, 11", "s_lshl_b32 s61, s32, 4", "s_add_u32 s61, s61, s57", f"s_add_u32 s61, s61, {X2}")
    A("v_and_b32 v21, 12, v2", "v_lshlrev_b32 v21, 7, v21")
    setexec(0x1111, 0)
    a("buffer_store_dwordx4 v[16:19], v21, s[52:55], s61 offen sc1")
    a("s_mov_b64 exec, -1")
    nop(1)
    lab("L_kjoin")
    if diag:
        A("s_cmp_ge_u32 s2, 8", "s_cbranch_scc1 L_nodiag", "s_cmp_lg_u32 s30, 0", "s_cbranch_scc1 L_nodiag", "s_lshl_b32 s61, s2, 2", "v_mov_b32 v20, s61", "v_mov_b32 v21, s68", "s_and_b32 s72, s72, 0xffff", "v_mov_b32 v22, s72",
          "s_mov_b64 exec, 1", "global_store_dword v20, v21, s[26:27]", "global_store_dword v20, v22, s[26:27] offset:32", "s_mov_b64 exec, -1")
        lab("L_nodiag")
    c("zero this wave's quarter of the out-projection A image; addresses for the tail")
    A("v_mov_b32 v16, 0", "v_mov_b32 v17, 0", "v_mov_b32 v18, 0", "v_mov_b32 v19, 0", "s_lshl_b32 s61, s33, 11", "v_lshl_add_u32 v20, v2, 4, s61",
      f"ds_write_b128 v20, v[16:19] offset:{L_AO}", f"ds_write_b128 v20, v[16:19] offset:{L_AO+1024}")
    A("s_lshl_b32 s61, s31, 5", "s_add_u32 s61, s61, s32", "s_lshl_b32 s61, s61, 12", "s_lshl_b32 s62, s33, 5", "s_add_u32 s61, s61, s62", f"s_add_u32 s70, s61, {X3}",
      "v_lshrrev_b32 v8, 1, v2", "v_and_b32 v9, 1, v2", "v_lshlrev_b32 v10, 7, v8", "v_lshl_add_u32 v10, v9, 4, v10",
      "v_subrev_u32 v8, s32, v8", "v_and_b32 v8, 31, v8", "v_lshlrev_b32 v8, 4, v8",
      "s_lshl_b32 s61, s31, 11", "s_lshr_b32 s62, s32, 3", "s_lshl_b32 s62, s62, 9", "s_add_u32 s61, s61, s62", f"s_add_u32 s71, s61, {X2}")
    A("v_lshrrev_b32 v11, 5, v2", "v_bfe_u32 v12, v2, 4, 1", "v_lshl_add_u32 v11, v12, 1, v11", "v_lshl_add_u32 v11, v9, 2, v11", "v_lshlrev_b32 v14, 1, v11", "v_lshlrev_b32 v11, 10, v11",
      "v_bfe_u32 v12, v2, 1, 3", "v_lshl_add_u32 v14, v12, 21, v14", "v_mul_u32_u24 v12, 18, v12", "v_add_u32 v11, v11, v12", "s_lshl_b32 s61, s33, 8", f"s_add_u32 s61, s61, {L_AO}", "v_add_u32 v11, s61, v11")
    c("final reducers: wave 0 of WGs with h < 4, s < 28; 8 output columns each (s45 >= 28: not a reducer)")
    PS = 8 * 16384
    if rs == 2: A("s_and_b32 s61, s32, 28", "s_lshr_b32 s62, s31, 1", "s_add_u32 s61, s61, s62", "s_bitcmp1_b32 s31, 0")
    elif rs == 1: A("s_and_b32 s61, s32, 28", "s_add_u32 s61, s61, s31", "s_sub_u32 s61, s61, 4", "s_cmp_lt_u32 s31, 4")
    else: A("s_and_b32 s61, s32, 28", "s_add_u32 s61, s61, s31", "s_cmp_ge_u32 s31, 4")
    A("s_cselect_b32 s61, 99, s61",
      "s_and_b32 s62, s32, 3", "s_lshl_b32 s63, s61, 2", "s_add_u32 s63, s63, s62", "s_lshl_b32 s46, s63, 4", "s_lshl_b32 s63, s63, 5",
      "s_cmp_lg_u32 s30, 0", "s_cselect_b32 s45, 99, s61",
      "s_cmp_ge_u32 s61, 14", f"s_cselect_b32 s62, {32*16384 - 1792}, 0", "s_add_u32 s63, s63, s62", f"s_add_u32 s44, s63, {X4 + side*8192}", f"s_add_u32 s40, s44, {PS}", f"s_add_u32 s41, s44, {2*PS}", f"s_add_u32 s42, s44, {3*PS}",
      "v_bfe_u32 v13, v2, 1, 2", "v_mul_u32_u24 v13, 1920, v13", "v_lshrrev_b32 v15, 3, v2", "v_lshl_add_u32 v13, v15, 14, v13", "v_lshl_add_u32 v13, v9, 4, v13",
      "s_mov_b32 s48, s24", "s_mov_b32 s49, s25", "s_mov_b32 s50, 1792", "s_mov_b32 s51, 0x20000",
      "s_lshl_b32 s58, s32, 2", "s_add_u32 s58, s58, s33", "v_mov_b32 v27, s56", f"v_mov_b32 v31, {TM:#x}", "v_mov_b32 v28, 0", "v_mul_u32_u24 v29, 384, v2",
      f"s_mov_b32 s47, {XG + side*8192}", "s_mul_i32 s57, s31, 384", "s_add_u32 s57, s57, s47")
    W = 24; G = 16
    c("wait until the partner V-wave is near the end of its stream, then fetch the group's softmax stats")
    A("s_lshl_b32 s61, s33, 2", f"s_add_u32 s61, s61, {L_FL+32}", "v_mov_b32 v20, s61", f"s_mov_b32 s59, {SPIN*20}")
    lab("L_twait")
    A("s_sleep 4", "ds_read_b32 v21, v20", "s_waitcnt lgkmcnt(0)", "v_readfirstlane_b32 s61, v21",
      "s_sub_u32 s59, s59, 1", "s_cbranch_scc1 L_twait_done", "s_cmp_eq_u32 s61, 0", "s_cbranch_scc1 L_twait")
    lab("L_twait_done")
    a(f"s_mov_b32 s59, {SPIN}")
    lab("L_wchk")
    A("buffer_load_dwordx4 v[32:35], v8, s[52:55], s71 offen sc1",
      "s_waitcnt vmcnt(0)", "v_cmp_ne_u32 vcc, s56, v33", "v_cmp_ne_u32 s[60:61], s56, v35", "s_or_b64 vcc, vcc, s[60:61]",
      "s_sub_u32 s59, s59, 1", "s_cbranch_scc1 L_wok", "s_cbranch_vccnz L_wchk")
    lab("L_wok")
    c("LDS word for the V-waves: 1 = the group spans several XCDs")
    A(f"v_and_b32 v{W+1}, 15, v34", f"v_cmp_ne_u32 vcc, s68, v{W+1}", "v_and_b32 v34, -16, v34")
    if force: a("s_mov_b64 vcc, -1")
    A("s_cmp_lg_u64 vcc, 0", "s_cselect_b32 s62, 1, 0", "s_mov_b32 s43, s62", f"v_mov_b32 v{W+1}, {L_FL+28}", f"v_mov_b32 v{W+2}, s62", f"ds_write_b32 v{W+1}, v{W+2}")
    c("weight of producer p: exp2((M_p - M) * c) / sum_p exp2((M_p - M) * c) * L_p")
    a(f"v_mov_b32 v{W+1}, v32")
    allred("max", [W+1], ["row_ror:8", "row_ror:4", "row_ror:2"], [W+2], [16, 32])
    A(f"v_sub_f32 v{W}, v32, v{W+1}", f"v_mul_f32 v{W}, s69, v{W}", f"v_exp_f32 v{W}, v{W}"); nop(1)
    a(f"v_mul_f32 v{W+1}, v{W}, v34")
    allred("add", [W+1], ["row_ror:8", "row_ror:4", "row_ror:2"], [W+2], [16, 32])
    a(f"v_rcp_f32 v{W+1}, v{W+1}"); nop(1)
    A(f"v_mul_f32 v{W}, v{W}, v{W+1}", f"s_mov_b32 s59, {SPIN}")
    a("s_waitcnt lgkmcnt(0)")
    a("s_barrier")
    c("first poll once this WG's own partials can have reached L2")
    if ob: a("s_barrier                 ; B35")
    if odelay: a(f"s_sleep {odelay}")
    lab("L_opoll")
    A(f"buffer_load_dwordx4 v[{G}:{G+3}], v10, s[52:55], s70 offen sc1", "s_waitcnt vmcnt(0)")
    c("xor clears the tag bits of valid data, so results do not depend on the tag")
    for k in range(4): a(f"v_xor_b32 v{G+k}, s{64+k}, v{G+k}")
    A(f"v_or3_b32 v20, v{G}, v{G+1}, v{G+2}", f"v_bitop3_b32 v20, v20, v{G+3}, v31 bitop3:0xa8")
    A("v_cmp_ne_u32 vcc, 0, v20", "s_cbranch_vccnz L_oretry")
    lab("L_opoll_done")
    a("s_mov_b64 exec, -1")
    if not vflag: A("s_cmp_eq_u32 s58, 1", "s_cbranch_scc1 L_flag")
    lab("L_noflag")
    A(f"v_pk_mul_f32 v[{G}:{G+1}], v[{G}:{G+1}], v[{W}:{W+1}] op_sel_hi:[1,0]", f"v_pk_mul_f32 v[{G+2}:{G+3}], v[{G+2}:{G+3}], v[{W}:{W+1}] op_sel_hi:[1,0]")
    nop(1)
    redscat(G)
    A(f"v_cvt_pk_bf16_f32 v{G}, v{G}, v{G}", f"ds_write_b16 v11, v{G}", "s_waitcnt lgkmcnt(0)")
    a("s_barrier")
    A("s_cmp_ge_u32 s45, 28", "s_cbranch_scc1 L_fin", f"s_mov_b32 s59, {SPIN}", "s_mov_b64 exec, 0xff")
    c("reducers: wait for the group flags so that the partials are read once, after they were written")
    lab("L_gpoll")
    A("buffer_load_dword v30, v29, s[52:55], s47 offen sc1", "s_sub_u32 s59, s59, 1", "s_cbranch_scc1 L_gdone", "s_waitcnt vmcnt(0)",
      "v_cmp_ne_u32 vcc, s56, v30", "s_mov_b64 exec, vcc", "s_cbranch_vccnz L_gpoll")
    lab("L_gdone")
    A("s_mov_b64 exec, -1", f"s_mov_b32 s59, {SPIN}")
    c("the flag runs ahead of the slowest partial stores; a read that comes too early costs a whole extra round trip")
    if gdelay: a(f"s_sleep {gdelay}")
    lab("L_fpoll")
    for n in range(4): a(f"buffer_load_dwordx4 v[{32+4*n}:{35+4*n}], v13, s[52:55], s{(44, 40, 41, 42)[n]} offen sc1")
    for n in range(4):
        a(f"s_waitcnt vmcnt({3-n})")
        b = 32 + 4 * n
        for k in range(4): a(f"v_xor_b32 v{b+k}, s{64+k}, v{b+k}")
        if n == 0: A(f"v_or3_b32 v20, v{b}, v{b+1}, v{b+2}", f"v_or_b32 v20, v20, v{b+3}")
        else: A(f"v_or3_b32 v20, v{b}, v{b+1}, v20", f"v_or3_b32 v20, v{b+2}, v{b+3}, v20")
        if n == 1: A("v_pk_add_f32 v[48:49], v[32:33], v[36:37]", "v_pk_add_f32 v[50:51], v[34:35], v[38:39]")
        if n >= 2: A(f"v_pk_add_f32 v[48:49], v[48:49], v[{b}:{b+1}]", f"v_pk_add_f32 v[50:51], v[50:51], v[{b+2}:{b+3}]")
    A(f"v_and_b32 v20, {TM:#x}, v20", "v_cmp_ne_u32 vcc, 0, v20", "s_cbranch_vccnz L_fretry")
    lab("L_fpoll_done")
    redscat(48)
    A("v_cvt_pk_bf16_f32 v48, v48, v48", "buffer_store_short v48, v14, s[48:51], s46 offen")
    if leak:
        A("s_cmp_lg_u32 s2, 0", "s_cbranch_scc1 L_noleak", "s_mov_b32 s61, s68" if leak == 1 else ("s_mov_b32 s61, s43" if leak == 2 else "s_min_u32 s61, s68, 1"))
        lab("L_leak")
        A("s_cmp_eq_u32 s61, 0", "s_cbranch_scc1 L_noleak", "s_sleep 127", "s_sub_u32 s61, s61, 1", "s_branch L_leak")
        lab("L_noleak")
    c("every WG has read the epoch by now: advance it")
    A("s_cmp_lg_u32 s46, 0", "s_cbranch_scc1 L_fin", "s_mov_b64 exec, 1", "buffer_store_dword v27, v28, s[52:55], 0 offen", "s_branch L_fin")
    lab("L_flag")
    A("s_mov_b64 exec, 1", "buffer_store_dword v27, v28, s[52:55], s57 offen sc1", "s_mov_b64 exec, -1", "s_branch L_noflag")
    lab("L_oretry")
    A("s_mov_b64 exec, vcc", "s_bcnt1_i32_b64 s61, vcc", f"s_cmp_le_u32 s61, {othr}", "s_cbranch_scc1 L_opoll_ns", f"s_sleep {osleep}")
    lab("L_opoll_ns")
    A("s_sub_u32 s59, s59, 1", "s_cbranch_scc0 L_opoll", "s_branch L_opoll_done")
    lab("L_fretry")
    A("s_sub_u32 s59, s59, 1", "s_cbranch_scc0 L_fpoll", "s_branch L_fpoll_done")

    c("================================ V-waves ================================")
    lab("L_vwave")
    a("s_setprio 3")
    c("pull the kernel's code into this XCD's L2")
    A("s_cmp_ge_u32 s32, 3", "s_cbranch_scc1 L_nopf", "s_getpc_b64 s[60:61]")
    lab("L_pc")
    A(f"s_sub_u32 s60, s60, L_pc-{KN}", "s_subb_u32 s61, s61, 0", "s_lshl_b32 s62, s32, 2", "s_add_u32 s62, s62, s33", "s_lshl_b32 s62, s62, 10",
      "v_lshl_add_u32 v8, v2, 4, s62", f"v_min_u32 v8, L_end-{KN}-12, v8", "global_load_dwordx4 v[252:255], v8, s[60:61]")
    lab("L_nopf")
    A(f"v_mov_b32 v5, {L_FL}", "v_mov_b32 v8, 0", "v_mov_b32 v9, 0", "v_mov_b32 v10, 0", "v_mov_b32 v11, 0",
      "ds_write_b128 v5, v[8:11]", "ds_write_b128 v5, v[8:11] offset:16", "ds_write_b128 v5, v[8:11] offset:32")
    c("q projection piece: column block s70 (64 columns), s69 units of 32 rows starting at row s71/2")
    A("v_lshrrev_b32 v6, 3, v2", "v_and_b32 v7, 7, v2", "v_lshlrev_b32 v12, 13, v6", "v_lshl_add_u32 v12, v7, 4, v12", "v_lshlrev_b32 v13, 1, v6")
    ne_tab = sum(v << (8 * i) for i, v in enumerate(nE))
    A("s_lshr_b32 s63, s31, 1", "s_lshl_b32 s60, s63, 5", "s_add_u32 s60, s60, s32", "s_sub_u32 s60, s60, 16",
      "s_mul_i32 s61, s60, 147", "s_lshr_b32 s61, s61, 10", "s_mul_i32 s62, s61, 7", "s_sub_u32 s62, s60, s62",
      "s_cmp_ge_u32 s62, 3", "s_addc_u32 s62, s62, 0", "s_lshl_b32 s61, s61, 3", "s_add_u32 s70, s61, s62",
      "s_lshl_b32 s63, s63, 3", f"s_mov_b32 s61, {ne_tab:#x}", "s_lshr_b32 s61, s61, s63", "s_and_b32 s69, s61, 0xff",
      "s_lshl_b32 s61, s32, 3", "s_add_u32 s61, s61, 3",
      "s_cmp_lt_i32 s60, 0", "s_cselect_b32 s70, s61, s70", f"s_cselect_b32 s69, {nE3}, s69",
      "s_sub_u32 s61, 14, s69", "s_bitcmp1_b32 s31, 0", "s_cselect_b32 s71, s69, 0", "s_cselect_b32 s69, s61, s69",
      "s_lshl_b32 s71, s71, 6", "s_lshl_b32 s61, s33, 4", "s_add_u32 s71, s71, s61")
    A("s_and_b32 s61, s70, 63", "s_lshl_b32 s61, s61, 7", "s_lshl_b32 s62, s71, 12", "s_add_u32 s61, s61, s62",
      "s_mov_b32 s50, 896", "s_mov_b32 s51, 0x20000", "s_mov_b32 s46, 3670016", "s_mov_b32 s47, 0x20000")
    a("s_waitcnt lgkmcnt(0)")
    A("s_load_dword s56, s[28:29], 0",
      "s_cmp_ge_u32 s70, 64", "s_cselect_b32 s44, s20, s10", "s_cselect_b32 s45, s21, s11", "s_cselect_b32 s48, s14, s4", "s_cselect_b32 s49, s15, s5")
    if eb0: a("s_barrier                 ; B0")
    WQ = 96; XR = 24
    NU = max(max(nE), 14 - min(nE), nE3, 14 - nE3)
    for n in range(NU):
        A(f"s_cmp_le_u32 s69, {n}", "s_cbranch_scc1 L_wqdone",
          f"buffer_load_dwordx4 v[{WQ+4*n}:{WQ+4*n+3}], v12, s[44:47], s61 offen nt", f"buffer_load_ushort v{XR+n}, v13, s[48:51], s71 offen offset:{n*64}")
        if n < NU - 1: a(f"s_add_u32 s61, s61, {32*8192}")
    lab("L_wqdone")
    if not eb0: a("s_barrier                 ; B0")
    c("V lane layout: lane (g, c) reads key g, 16 B chunk c; Wo: rows 8g+t, 128 columns per wave (64 for wave 3)")
    A("s_mov_b32 s36, s8", "s_mov_b32 s37, s9", "s_mov_b32 s40, s18", "s_mov_b32 s41, s19", "s_mov_b32 s52, s28", "s_mov_b32 s53, s29")
    A("v_lshlrev_b32 v14, 9, v3", "v_lshl_add_u32 v14, v4, 4, v14")
    A("s_cmp_ge_u32 s32, 16", "s_cselect_b32 s44, s22, s12", "s_cselect_b32 s45, s23, s13")
    A("s_and_b32 s48, s32, 15", "s_lshl_b32 s48, s48, 5", "s_lshl_b32 s62, s31, 9", "s_add_u32 s48, s48, s62", "s_mul_i32 s48, s48, 896",
      "s_lshl_b32 s62, s33, 8", "s_add_u32 s48, s48, s62", "s_add_u32 s49, s48, 3584",
      "s_cmp_eq_u32 s33, 3", "s_cselect_b32 s62, 7, 15", "s_cselect_b32 s58, 0x00ff00ff, -1")
    A("v_mul_u32_u24 v15, 7168, v3", "v_lshl_add_u32 v15, v4, 4, v15", "v_cmp_lt_u32 vcc, s62, v4", "v_mov_b32 v8, 0x40000000"); nop(1)
    a("v_cndmask_b32 v15, v15, v8, vcc")
    if tlb:
        c("first touch of the pages this CU needs later (address translation warm-up, values unused)")
        a("s_mov_b64 exec, 1")
        if tlb & 1: A("buffer_load_dword v40, v14, s[36:39], s34 offen nt", "buffer_load_dword v41, v14, s[40:43], s35 offen nt", "buffer_load_dword v42, v15, s[44:47], s48 offen nt")
        if tlb & 2: A(f"s_mov_b32 s62, {XG + 0x4000}", "buffer_load_dword v43, v14, s[52:55], s62 offen", "global_load_dword v44, v14, s[24:25]")
        a("s_mov_b64 exec, -1")
    a("s_waitcnt lgkmcnt(0)")
    maketag()
    AC = 16
    for k in range(8): a(f"v_mov_b32 v{AC+k}, 0")
    a("s_waitcnt vmcnt(0)")
    for n in range(NU):
        A(f"s_cmp_le_u32 s69, {n}", "s_cbranch_scc1 L_fmadone", f"v_lshlrev_b32 v{XR+n}, 16, v{XR+n}")
        for k in range(4):
            w = WQ + 4 * n + k
            A(f"v_lshlrev_b32 v8, 16, v{w}", f"v_and_b32 v9, 0xffff0000, v{w}", f"v_fmac_f32 v{AC+2*k}, v8, v{XR+n}", f"v_fmac_f32 v{AC+2*k+1}, v9, v{XR+n}")
    lab("L_fmadone")
    allred("add", [AC + k for k in range(8)], ["row_ror:8"], [], [])
    A("s_lshl_b32 s61, s33, 10", f"s_add_u32 s61, s61, {L_QP}", "v_lshlrev_b32 v8, 8, v3", "v_lshl_add_u32 v8, v7, 5, v8", "v_add_u32 v8, s61, v8")
    setexec(0x00ff00ff, 0x00ff00ff)
    A(f"ds_write_b128 v8, v[{AC}:{AC+3}]", f"ds_write_b128 v8, v[{AC+4}:{AC+7}] offset:16")
    A("s_mov_b64 exec, 1", "v_mov_b32 v9, 1", "s_waitcnt lgkmcnt(0)", "ds_add_rtn_u32 v10, v5, v9", "s_waitcnt lgkmcnt(0)",
      "s_mov_b64 exec, -1", "v_readfirstlane_b32 s61, v10", "s_cmp_lg_u32 s61, 3", "s_cbranch_scc1 L_vload")
    c("last V-wave: sum the 16 partial rows and publish this piece of q")
    A("v_lshlrev_b32 v8, 10, v3", "v_lshl_add_u32 v8, v4, 4, v8")
    for k in range(4): a(f"ds_read_b128 v[{16+4*k}:{19+4*k}], v8 offset:{L_QP + k*256}")
    a("s_waitcnt lgkmcnt(0)")
    for k in range(4): A(f"v_add_f32 v{16+k}, v{16+k}, v{20+k}", f"v_add_f32 v{24+k}, v{24+k}, v{28+k}")
    for k in range(4): a(f"v_add_f32 v{16+k}, v{16+k}, v{24+k}")
    allred("add", [16, 17, 18, 19], [], [20, 21, 22, 23], [16, 32])
    A("s_bfe_u32 s61, s70, 0x30003", "s_lshl_b32 s61, s61, 13", "s_lshr_b32 s62, s70, 6", "s_lshl_b32 s62, s62, 12", "s_add_u32 s61, s61, s62",
      "s_and_b32 s62, s70, 7", "s_lshl_b32 s62, s62, 8", "s_add_u32 s61, s61, s62", "s_and_b32 s62, s31, 1", "s_lshl_b32 s62, s62, 11", "s_add_u32 s61, s61, s62",
      f"s_add_u32 s61, s61, {X1}", "v_lshlrev_b32 v8, 4, v4", "v_mov_b32 v9, 0xff")
    pack(16, 16, 9)
    setexec(0xffff, 0)
    A("buffer_store_dwordx4 v[16:19], v8, s[52:55], s61 offen sc1", "s_mov_b64 exec, -1")
    lab("L_vload")
    a("s_setprio 1")
    VB = 96; WB = 16; PB_ = 48; OD = 76; AB = 68
    vl = []; reg = VB
    for br, npc, srd, so in ((0, 16, 36, 34), (1, 4, 40, 35)):
        for i in range(npc):
            for hf in range(2):
                pre = [f"s_xor_b32 s57, s{so}, {i << 13}"] if hf == 0 else []
                vl.append(pre + [f"buffer_load_dwordx4 v[{reg}:{reg+3}], v14, s[{srd}:{srd+3}], s57 offen offset:{hf*256} nt"]); reg += 4
    wo = [[f"buffer_load_dwordx4 v[{WB+4*t}:{WB+4*t+3}], v15, s[44:47], s{48 if t < 4 else 49} offen offset:{(t&3)*896} nt"] for t in range(8)]
    issue = vl[:2*wo_at] + wo[:wo_pre] + vl[2*wo_at:] + wo[wo_pre:]
    vpos = [k if k < 2*wo_at else k + wo_pre for k in range(40)]
    c("v8..v11: masks that place p at position lane&7 of the A row (head, i'); addresses for the tail")
    A("v_and_b32 v12, 1, v2", "v_lshlrev_b32 v12, 4, v12", "v_mov_b32 v13, 0xffff", "v_lshlrev_b32 v12, v12, v13", "v_bfe_u32 v13, v2, 1, 2")
    for j in range(4):
        a(f"v_cmp_eq_u32 vcc, {j}, v13"); nop(2); a(f"v_cndmask_b32 v{8+j}, 0, v12, vcc")
    A("s_lshl_b32 s61, s33, 12", "v_lshl_add_u32 v92, v2, 4, s61", "s_lshl_b32 s61, s33, 10", "v_lshl_add_u32 v93, v2, 4, s61",
      "s_lshr_b32 s61, s33, 1", "s_lshl_b32 s62, s61, 5", f"s_add_u32 s62, s62, {L_C}", "v_lshrrev_b32 v12, 5, v2", "v_lshl_add_u32 v94, v12, 4, s62",
      "s_lshl_b32 s61, s61, 4", "s_and_b32 s62, s33, 1", "s_lshl_b32 s62, s62, 2", "s_add_u32 s61, s61, s62",
      "v_lshrrev_b32 v13, 2, v4", "v_lshl_add_u32 v13, v12, 3, v13", "v_add_u32 v13, s61, v13",
      "v_add_u32 v1, s32, v13", "v_and_b32 v1, 31, v1", "v_lshlrev_b32 v1, 7, v1", "v_lshl_add_u32 v95, v13, 12, v1",
      "v_and_b32 v13, 3, v2", "v_lshl_add_u32 v95, v13, 5, v95", "v_and_b32 v13, 1, v3", "v_lshl_add_u32 v95, v13, 4, v95",
      "s_lshl_b32 s61, s31, 17", f"s_add_u32 s70, s61, {X3}", f"v_mov_b32 v5, {TM:#x}",
      "s_lshr_b32 s61, s32, 4", "s_lshl_b32 s61, s61, 7", "s_lshl_b32 s62, s31, 4", "s_add_u32 s61, s61, s62", "s_and_b32 s62, s32, 15", "s_add_u32 s61, s61, s62",
      "s_and_b32 s62, s61, 3", "s_lshr_b32 s61, s61, 2", "s_lshl_b32 s61, s61, 14", "s_mul_i32 s62, s62, 1920", "s_add_u32 s61, s61, s62",
      "s_lshl_b32 s62, s33, 9", "s_add_u32 s61, s61, s62", f"s_add_u32 s71, s61, {X4 + side*8192}",
      "v_lshlrev_b32 v6, 5, v4", "v_lshl_add_u32 v6, v13, 4, v6", "v_lshlrev_b32 v7, 4, v2")
    a("s_barrier                 ; B1")
    def pwait():
        c("p of the partner K-wave")
        A("s_lshl_b32 s61, s33, 2", f"s_add_u32 s61, s61, {L_FL+8}", "v_mov_b32 v12, s61", f"s_mov_b32 s59, {SPIN*100}")
        lab("L_pwait")
        A("ds_read_b32 v13, v12", "s_waitcnt lgkmcnt(0)", "v_readfirstlane_b32 s69, v13",
          "s_sub_u32 s59, s59, 1", "s_cbranch_scc1 L_pwait_done", "s_cmp_eq_u32 s69, 0", "s_cbranch_scc1 L_pwait")
        lab("L_pwait_done")
        A("v_bfe_u32 v12, v2, 3, 1", "v_lshl_add_u32 v12, v12, 2, v3", "s_lshl_b32 s61, s33, 10", f"s_add_u32 s61, s61, {L_P}",
          "v_lshl_add_u32 v13, v12, 6, s61", "v_lshl_add_u32 v12, v12, 4, s61")
        for k in range(4): a(f"ds_read_b128 v[{PB_+4*k}:{PB_+4*k+3}], v13 offset:{16*k}")
        A(f"ds_read_b128 v[{PB_+16}:{PB_+19}], v12 offset:512", "s_waitcnt lgkmcnt(0)")
    def pv(step, issued):
        br, b = (0, step) if step < 16 else (1, step - 16)
        n = b >> 1; t = b & 1
        p = PB_ + (t * 8 + n if br == 0 else 16 + t * 2 + n)
        ab = AB + (step & 1) * 4
        for j in range(4): a(f"v_and_b32 v{ab+j}, v{p}, v{8+j}")
        A(f"s_waitcnt vmcnt({issued - 1 - vpos[2*step+1]})", "s_nop 0")
        for hf in range(2):
            d = OD + (br * 2 + hf) * 4; r = VB + (2 * step + hf) * 4
            cc = "0" if b == 0 else f"v[{d}:{d+3}]"
            a(f"v_mfma_f32_16x16x32_bf16 v[{d}:{d+3}], v[{ab}:{ab+3}], v[{r}:{r+3}], {cc}")
        if step == 17:
            for k in range(2): a(f"ds_write_b128 v92, v[{OD+4*k}:{OD+4*k+3}] offset:{L_OP + k*1024}")
    ns = 0; havep = False
    for ni0, ins in enumerate(issue):
        NVc = NV2 if (NV2 and ni0 >= 48 - late) else NV
        if ni0 >= NVc: a(f"s_waitcnt vmcnt({NVc-1})")
        A(*ins); ni = ni0 + 1
        if ni == trig: A("s_lshl_b32 s61, s33, 2", f"s_add_u32 s61, s61, {L_FL+32}", "v_mov_b32 v12, s61", "ds_write_b32 v12, v12")
        if ni == 48: stamp(3)
        if ni == 2 * p0: pwait(); havep = True
        for _ in range(pvs):
            if havep and ns < 20 and vpos[2*ns+1] < ni - NVc:
                pv(ns, ni); ns += 1
    while ns < 20:
        pv(ns, 48); ns += 1
    nop(7)
    for k in range(2, 4): a(f"ds_write_b128 v92, v[{OD+4*k}:{OD+4*k+3}] offset:{L_OP + k*1024}")
    a("s_waitcnt lgkmcnt(0)")
    a("s_barrier                 ; B3")
    c("combine the 4 waves' partials (rescaled to the WG max) and publish X3")
    T = 96
    A(f"ds_read_b32 v13, v7 offset:{L_FL+28}", f"ds_read_b128 v[{T+16}:{T+19}], v94")
    for k in range(4): a(f"ds_read_b128 v[{T+4*k}:{T+4*k+3}], v93 offset:{L_OP + k*4096}")
    for k in range(4):
        a(f"s_waitcnt lgkmcnt({3-k})")
        if k == 0: a("v_readfirstlane_b32 s61, v13")
        if k == 1: a("s_cmp_eq_u32 s61, 0")
        cp = T + 16 + (k & 2); sel = k & 1
        for m in (0, 2):
            if k == 0: a(f"v_pk_mul_f32 v[{T+20+m}:{T+21+m}], v[{T+m}:{T+m+1}], v[{cp}:{cp+1}] op_sel:[0,{sel}] op_sel_hi:[1,{sel}]")
            else: a(f"v_pk_fma_f32 v[{T+20+m}:{T+21+m}], v[{T+4*k+m}:{T+4*k+m+1}], v[{cp}:{cp+1}], v[{T+20+m}:{T+21+m}] op_sel:[0,{sel},0] op_sel_hi:[1,{sel},1]")
    pack(T + 20, T + 20, 5)
    a("s_cbranch_scc0 L_x3slow")
    a(f"buffer_store_dwordx4 v[{T+20}:{T+23}], v95, s[52:55], s70 offen")
    lab("L_x3done")
    if vflag: A("s_lshl_b32 s63, s32, 2", "s_add_u32 s63, s63, s33", "s_mul_i32 s60, s31, 384", f"s_add_u32 s60, s60, {XG + side*8192}", "v_mov_b32 v12, s56")
    if ob == 1: A("s_waitcnt vmcnt(0)", "s_barrier                 ; B35")
    elif ob == 2: A("s_waitcnt vmcnt(1)", "s_barrier                 ; B35")
    else: a("s_waitcnt vmcnt(1)")
    a("s_barrier                 ; B4")
    c("out projection of this WG's 32 rows, publish X4")
    AO = T + 32
    for t in range(8): a(f"ds_read_b128 v[{AO+4*t}:{AO+4*t+3}], v7 offset:{L_AO + t*1024}")
    for t in range(8):
        a(f"s_waitcnt lgkmcnt({7-t})")
        cc = "0" if t == 0 else f"v[{T}:{T+3}]"
        a(f"v_mfma_f32_16x16x32_bf16 v[{T}:{T+3}], v[{AO+4*t}:{AO+4*t+3}], v[{WB+4*t}:{WB+4*t+3}], {cc}")
    A("s_mov_b32 exec_lo, s58", "s_mov_b32 exec_hi, 0")
    nop(6)
    pack(T + 4, T, 5)
    a(f"buffer_store_dwordx4 v[{T+4}:{T+7}], v6, s[52:55], s71 offen sc1")
    if vflag:
        A("s_cmp_lg_u32 s63, 3", "s_cbranch_scc1 L_fin", "s_mov_b64 exec, 1", "buffer_store_dword v12, v7, s[52:55], s60 offen sc1")
    lab("L_fin")
    if mini:
        A("s_cmp_lg_u32 s30, 0", "s_cbranch_scc1 L_end", "s_mov_b64 exec, -1")
        stamp(9)
        A("s_waitcnt lgkmcnt(0)", "s_lshl_b32 s61, s2, 9", f"s_add_u32 s61, s61, {STAMP}", "v_mov_b32 v32, s72", "v_mov_b32 v33, s90", "v_mov_b32 v1, 0", "s_mov_b64 exec, 1",
          "buffer_store_dwordx2 v[32:33], v1, s[52:55], s61 offen")
    elif stamps:
        a("s_mov_b64 exec, -1")
        stamp(9)
        a("s_waitcnt lgkmcnt(0)")
        A("s_lshl_b32 s61, s2, 3", "s_add_u32 s61, s61, s30", "s_lshl_b32 s61, s61, 6", f"s_add_u32 s61, s61, {STAMP}")
        for k in range(10): a(f"v_mov_b32 v{32+k}, s{72+2*k}")
        A("s_getreg_b32 s62, hwreg(HW_REG_XCC_ID)", "v_mov_b32 v42, s62", "v_mov_b32 v43, s59", "v_mov_b32 v1, 0", "s_mov_b64 exec, 1")
        for k in range(3): a(f"buffer_store_dwordx4 v[{32+4*k}:{35+4*k}], v1, s[52:55], s61 offen offset:{16*k}")
    lab("L_end"); a("s_endpgm")
    lab("L_x3slow")
    A(f"buffer_store_dwordx4 v[{T+20}:{T+23}], v95, s[52:55], s70 offen sc1", "s_branch L_x3done")
    L.append('.section .rodata,"a"'); L.append(".p2align 6"); L.append(f".amdhsa_kernel {KN}")
    for s in ("next_free_vgpr 256", "next_free_sgpr 96", "accum_offset 256", "group_segment_fixed_size 0", "kernarg_size 104", "user_sgpr_count 2", "user_sgpr_kernarg_segment_ptr 1", "system_sgpr_workgroup_id_x 1"):
        L.append("  .amdhsa_" + s)
    L.append(".end_amdhsa_kernel")
    open(name, "w").write("\n".join(L) + "\n")

if __name__ == "__main__":
    for r in "abc": gen(f"LB{r}.s", leak=2); gen(f"LC{r}.s", leak=3)
```
